```python
import torch

def _softmax(x, axis=-1):
    return torch.softmax(x, dim=axis)
def _gelu(x):
    return torch.nn.functional.gelu(x, approximate="tanh")
def _silu(x):
    return torch.nn.functional.silu(x)
def _sigmoid(x):
    return torch.sigmoid(x)
def _layernorm(x, axis=-1, eps=1e-5):
    m = x.mean(dim=axis, keepdim=True)
    v = x.var(dim=axis, keepdim=True, unbiased=False)
    return (x - m) / torch.sqrt(v + eps)
def _scatter_add(tgt, idx, src, axis=0):
    return tgt.clone().index_add_(axis, idx, src)
def _segment_sum(src, seg, n):
    out = torch.zeros((n,) + src.shape[1:], dtype=src.dtype)
    return out.index_add_(0, seg, src)
def _pad(x, pw):
    flat = tuple(v for pair in reversed(pw) for v in pair)
    return torch.nn.functional.pad(x, flat)

kernel_name = 'gated_mix__softmax_full_mha__softmax_full_mha__prompt'

def setup_inputs():

    _w = (lambda a: (lambda t: t.to(torch.bfloat16) if t.is_floating_point() else t)(torch.as_tensor(a)))
    def _A_setup():
        B, S, D = 1, 2048, 576
        return {
            "x": _w((lambda *s: torch.randn(*s, dtype=torch.bfloat16) * 0.05)(B, S, D)),
            "wqkv": _w((lambda *s: torch.randn(*s, dtype=torch.bfloat16) * 0.8)(D, 3 * D)),
            "wo": _w((lambda *s: torch.randn(*s, dtype=torch.bfloat16) * 0.05)(D, D)),
        }
    _A_in = _A_setup()

    def _B_setup():
        B, S, D = 1, 2048, 576
        return {
            "x": _w((lambda *s: torch.randn(*s, dtype=torch.bfloat16) * 0.05)(B, S, D)),
            "wqkv": _w((lambda *s: torch.randn(*s, dtype=torch.bfloat16) * 0.8)(D, 3 * D)),
            "wo": _w((lambda *s: torch.randn(*s, dtype=torch.bfloat16) * 0.05)(D, D)),
        }
    _B_in = _B_setup()

    return {
        "A_x": _A_in["x"],
        "A_wqkv": _A_in["wqkv"],
        "A_wo": _A_in["wo"],
        "B_x": _B_in["x"],
        "B_wqkv": _B_in["wqkv"],
        "B_wo": _B_in["wo"],
        "gate_w": _w((lambda *s: torch.randn(*s, dtype=torch.bfloat16) * 0.05)(576) * 16.0),
    }

def reference(A_x, A_wqkv, A_wo, B_x, B_wqkv, B_wo, gate_w):
    def _A_ref(x, wqkv, wo):
        B, S, D = x.shape
        H = 32; Dh = D // H
        qkv = (lambda x, *d: x.permute(*d))((x @ wqkv).reshape(B, S, 3, H, Dh), 2, 0, 3, 1, 4)
        q, k, v = qkv[0], qkv[1], qkv[2]
        scale = Dh ** -0.5
        scores = torch.einsum("bhqd,bhkd->bhqk", q, k) * scale
        p = _softmax(scores, axis=-1)
        o = torch.einsum("bhqk,bhkd->bhqd", p, v)
        return (lambda x, *d: x.permute(*d))(o, 0, 2, 1, 3).reshape(B, S, D) @ wo

    def _B_ref(x, wqkv, wo):
        B, S, D = x.shape
        H = 32; Dh = D // H
        qkv = (lambda x, *d: x.permute(*d))((x @ wqkv).reshape(B, S, 3, H, Dh), 2, 0, 3, 1, 4)
        q, k, v = qkv[0], qkv[1], qkv[2]
        scale = Dh ** -0.5
        scores = torch.einsum("bhqd,bhkd->bhqk", q, k) * scale
        p = _softmax(scores, axis=-1)
        o = torch.einsum("bhqk,bhkd->bhqd", p, v)
        return (lambda x, *d: x.permute(*d))(o, 0, 2, 1, 3).reshape(B, S, D) @ wo

    x = A_x
    g = _sigmoid((x * gate_w).sum(-1, keepdims=True))
    a = _A_ref(x, A_wqkv, A_wo)
    b = _B_ref(x, B_wqkv, B_wo)
    return g * a + (1 - g) * b
```

```python
import math, struct, sys

NAME = "gated_mix__softmax_full_mha__softmax_full_mha__prompt"

CH = 4864
KVSZ = 32 * CH
QCH = 2304
QOFF = KVSZ
HS = KVSZ + 32 * QCH
GATE = 64 * HS
O1 = 15 * 1024 * 1024
O2 = O1 + 64 * 65536
WOP = O2 + 16 * 32768
WS_BYTES = 268435456
OOB = 0x80000000

QSCALE = (18 ** -0.5) * math.log2(math.e)


def f32(x):
    return "0x%08x" % struct.unpack("<I", struct.pack("<f", x))[0]


class E:
    def __init__(s):
        s.l = []

    def __call__(s, x):
        s.l.append("    " + x)

    def label(s, x):
        s.l.append(x + ":")

    def raw(s, x):
        s.l.append(x)

    def text(s):
        return "\n".join(s.l) + "\n"


def vr(b, n):
    return f"v[{b}:{b+n-1}]" if n > 1 else f"v{b}"


def ar(b, n):
    return f"a[{b}:{b+n-1}]" if n > 1 else f"a{b}"


def header(e, name):
    e.raw(".text")
    e.raw(f".globl {name}")
    e.raw(".p2align 8")
    e.raw(f".type {name},@function")
    e.label(name)


def descriptor(e, name, vgpr, accum, sgpr=96):
    e.raw('.section .rodata,"a"')
    e.raw(".p2align 6")
    e.raw(f".amdhsa_kernel {name}")
    e.raw(f"  .amdhsa_next_free_vgpr {vgpr}")
    e.raw(f"  .amdhsa_next_free_sgpr {sgpr}")
    e.raw(f"  .amdhsa_accum_offset {accum}")
    e.raw("  .amdhsa_group_segment_fixed_size 0")
    e.raw("  .amdhsa_kernarg_size 80")
    e.raw("  .amdhsa_user_sgpr_count 2")
    e.raw("  .amdhsa_user_sgpr_kernarg_segment_ptr 1")
    e.raw("  .amdhsa_system_sgpr_workgroup_id_x 1")
    e.raw(".end_amdhsa_kernel")


def srd(e, d, ptr, nbytes):
    e(f"s_mov_b32 s{d}, s{ptr}")
    e(f"s_mov_b32 s{d+1}, s{ptr+1}")
    e(f"s_mov_b32 s{d+2}, {nbytes}")
    e(f"s_mov_b32 s{d+3}, 0x00020000")


K1_SLOT = 45056
K1_LDS = 3 * K1_SLOT


def gen_qkv(e, opt):
    n = "qkv_kernel"
    header(e, n)
    e("s_cmp_ge_u32 s2, 256")
    e("s_cbranch_scc1 .Lqkv_end")
    e("s_load_dwordx4 s[4:7], s[0:1], 0")
    e("s_load_dwordx2 s[8:9], s[0:1], 32")
    e("s_load_dwordx2 s[10:11], s[0:1], 48")
    e("s_load_dwordx2 s[28:29], s[0:1], 72")
    e("v_lshrrev_b32 v1, 6, v0")
    e("v_and_b32 v0, 63, v0")
    e("v_readfirstlane_b32 s3, v1")
    e("s_and_b32 s30, s2, 7")
    e("s_lshr_b32 s31, s2, 3")
    e("s_and_b32 s32, s30, 1")
    e("s_lshl_b32 s32, s32, 3")
    e("s_and_b32 s33, s31, 7")
    e("s_add_u32 s32, s32, s33")
    e("s_lshr_b32 s33, s30, 1")
    e("s_lshl_b32 s33, s33, 2")
    e("s_lshr_b32 s34, s31, 3")
    e("s_add_u32 s33, s33, s34")
    e("s_lshr_b32 s34, s33, 3")
    e("s_and_b32 s35, s33, 7")
    e("s_waitcnt lgkmcnt(0)")
    srd(e, 12, 4, 2048 * 1152)
    e("s_cmp_eq_u32 s34, 0")
    e("s_cselect_b32 s16, s6, s8")
    e("s_cselect_b32 s17, s7, s9")
    e(f"s_mov_b32 s18, {576*3456}")
    e("s_mov_b32 s19, 0x00020000")
    e("s_cmp_ge_u32 s3, 4")
    e("s_cbranch_scc0 .Lqkv_consumer")

    e("s_sub_u32 s36, s3, 4")
    e("v_lshrrev_b32 v1, 3, v0")
    e("v_and_b32 v2, 7, v0")
    e("v_lshrrev_b32 v3, 4, v0")
    e("v_xor_b32 v4, v2, v3")
    e("v_xor_b32 v5, 4, v4")
    e("s_lshl_b32 s37, s32, 7")
    e("s_lshl_b32 s38, s36, 5")
    e("s_add_u32 s37, s37, s38")
    e("v_add_u32 v1, s37, v1")
    e("v_mul_u32_u24 v1, 1152, v1")
    for j in range(4):
        src = 4 if j % 2 == 0 else 5
        e(f"v_lshl_add_u32 v{10+j}, v{src}, 4, v1")
        if j:
            e(f"v_add_u32 v{10+j}, {j*8*1152}, v{10+j}")
    e("s_mul_i32 s38, s35, 432")
    e("s_lshl_b32 s39, s36, 6")
    e("s_mov_b32 s40, 0x97b425f")
    for j in range(7):
        d = 14 + j
        e(f"v_add_u32 v1, s39, v0")
        if j:
            e(f"v_add_u32 v1, {256*j}, v1")
        e("v_mul_hi_u32 v2, v1, s40")
        e("v_mul_u32_u24 v3, 27, v2")
        e("v_sub_u32 v3, v1, v3")
        e("v_and_b32 v4, 0x30, v2")
        e("v_and_b32 v5, 1, v2")
        e("v_lshl_add_u32 v4, v5, 2, v4")
        e("v_bfe_u32 v5, v2, 1, 2")
        e("v_add_u32 v4, v4, v5")
        e("v_and_b32 v5, 8, v2")
        e("v_add_u32 v4, v4, v5")
        e("v_mul_u32_u24 v4, 3456, v4")
        e("v_lshl_add_u32 v4, v3, 4, v4")
        e(f"v_add_u32 v{d}, s38, v4")
        if j == 6:
            e("v_cmp_gt_u32 vcc, 64, v2")
            e(f"v_mov_b32 v5, {OOB:#x}")
            e("s_nop 0")
            e(f"v_cndmask_b32 v{d}, v5, v{d}, vcc")
    e("s_lshl_b32 s41, s36, 12")
    e("s_lshl_b32 s42, s36, 10")
    e("s_add_u32 s42, s42, 16384")

    def issue(stage):
        sb = (stage % 3) * K1_SLOT
        e(f"s_mov_b32 s43, {stage*128}")
        e(f"s_mov_b32 s44, {stage*64*3456}")
        for j in range(7):
            e(f"s_add_u32 m0, s42, {sb + j*4096}")
            e("s_nop 0")
            e(f"buffer_load_dwordx4 v{14+j}, s[16:19], s44 offen lds")
            if j < 4:
                e(f"s_add_u32 m0, s41, {sb + j*1024}")
                e("s_nop 0")
                e(f"buffer_load_dwordx4 v{10+j}, s[12:15], s43 offen lds")

    for s in range(3):
        issue(s)
    for s in range(9):
        issued = 2 if s <= 1 else min(8, s + 1)
        e(f"s_waitcnt vmcnt({11*(issued - s)})")
        e("s_barrier")
        if s >= 1 and s + 2 <= 8:
            issue(s + 2)
    e("s_endpgm")

    e.label(".Lqkv_consumer")
    srd(e, 20, 28, WS_BYTES)
    srd(e, 24, 10, 1152)
    e("s_and_b32 s36, s3, 1")
    e("s_lshr_b32 s37, s3, 1")
    e("s_lshl_b32 s38, s32, 7")
    e("s_lshl_b32 s39, s33, 3")
    e("s_add_u32 s38, s38, s39")
    e("s_lshl_b32 s39, s3, 1")
    e("s_add_u32 s38, s38, s39")
    e("v_lshrrev_b32 v1, 5, v0")
    e("v_add_u32 v1, s38, v1")
    e("v_and_b32 v2, 31, v0")
    e("v_mul_u32_u24 v2, 36, v2")
    e("v_mov_b32 v3, 1152")
    e("v_mad_u32_u24 v3, v1, v3, v2")
    e("buffer_load_dwordx4 v[112:115], v3, s[12:15], 0 offen")
    e("buffer_load_dwordx4 v[116:119], v3, s[12:15], 0 offen offset:16")
    e("buffer_load_dword v120, v3, s[12:15], 0 offen offset:32")
    e("buffer_load_dwordx4 v[124:127], v2, s[24:27], 0 offen")
    e("buffer_load_dwordx4 v[128:131], v2, s[24:27], 0 offen offset:16")
    e("buffer_load_dword v132, v2, s[24:27], 0 offen offset:32")
    e("v_lshlrev_b32 v134, 2, v1")
    npf = 0
    if opt.get("k1_prefetch", 1):
        npf = 2
        e("s_lshl_b32 s39, s31, 2")
        e("s_add_u32 s39, s39, s3")
        e("s_and_b32 s40, s30, 1")
        e("s_lshl_b32 s40, s40, 10")
        e("s_lshl_b32 s41, s39, 3")
        e("s_add_u32 s40, s40, s41")
        e("v_mul_u32_u24 v4, 43, v0")
        e("v_lshrrev_b32 v4, 8, v4")
        e("v_mul_u32_u24 v5, 6, v4")
        e("v_sub_u32 v5, v0, v5")
        e("v_add_u32 v4, s40, v4")
        e("v_mul_u32_u24 v4, 1152, v4")
        e("v_lshl_add_u32 v4, v5, 7, v4")
        e("v_add_u32 v4, 384, v4")
        e("v_cmp_gt_u32 vcc, 48, v0")
        e(f"v_mov_b32 v6, {OOB:#x}")
        e("s_nop 0")
        e("v_cndmask_b32 v4, v6, v4, vcc")
        e("buffer_load_dword v213, v4, s[12:15], 0 offen")
        e("s_mul_i32 s40, s39, 3")
        e("s_add_u32 s40, s40, 192")
        e("s_lshr_b32 s41, s30, 1")
        e("s_and_b32 s41, s41, 1")
        e("s_mul_i32 s41, s41, 1664")
        e("v_mul_u32_u24 v4, 37, v0")
        e("v_lshrrev_b32 v4, 9, v4")
        e("v_mul_u32_u24 v5, 14, v4")
        e("v_sub_u32 v5, v0, v5")
        e("v_add_u32 v4, s40, v4")
        e("v_mul_u32_u24 v4, 3456, v4")
        e("v_lshl_add_u32 v4, v5, 7, v4")
        e("v_add_u32 v4, s41, v4")
        e("v_cmp_gt_u32 vcc, 42, v0")
        e("s_nop 1")
        e("v_cndmask_b32 v4, v6, v4, vcc")
        e("buffer_load_dword v214, v4, s[16:19], 0 offen")
    e("v_and_b32 v1, 15, v0")
    e("v_lshrrev_b32 v2, 4, v0")
    e("v_bfe_u32 v3, v0, 1, 3")
    e("v_xor_b32 v3, v2, v3")
    e("s_lshl_b32 s38, s37, 6")
    e("v_add_u32 v4, s38, v1")
    e("v_lshlrev_b32 v4, 7, v4")
    e("v_lshl_add_u32 v200, v3, 4, v4")
    e("v_xor_b32 v201, 64, v200")
    e("v_lshrrev_b32 v3, 2, v1")
    e("v_lshlrev_b32 v3, 1, v3")
    e("v_lshl_add_u32 v3, v2, 3, v3")
    e("v_mul_u32_u24 v3, 432, v3")
    e("s_mul_i32 s38, s36, 216")
    e("s_add_u32 s38, s38, 16384")
    e("v_add_u32 v3, s38, v3")
    e("v_and_b32 v4, 3, v0")
    e("v_lshrrev_b32 v5, 1, v4")
    e("v_lshl_add_u32 v5, v4, 1, v5")
    e("v_lshl_add_u32 v202, v5, 3, v3")
    e("v_mul_u32_u24 v5, 72, v4")
    e("v_add3_u32 v203, v5, v3, 32")
    for j in range(4):
        e(f"v_add_u32 v{204+j}, {2*K1_SLOT}, v{200+j}")
    e("v_lshrrev_b32 v3, 1, v2")
    e(f"s_mov_b32 s38, {HS}")
    e("v_mul_lo_u32 v3, v3, s38")
    e("v_and_b32 v4, 1, v2")
    e("v_lshl_add_u32 v5, v4, 9, v3")
    e("v_lshl_add_u32 v208, v1, 4, v5")
    e("v_lshl_add_u32 v5, v4, 4, v3")
    e("v_lshrrev_b32 v6, 2, v1")
    e("v_mul_u32_u24 v6, 160, v6")
    e("v_and_b32 v7, 3, v1")
    e("v_lshl_add_u32 v6, v7, 5, v6")
    e("v_add_u32 v209, v5, v6")
    e("s_mul_i32 s38, s35, 12")
    e("s_mul_i32 s39, s36, 6")
    e("s_add_u32 s45, s38, s39")
    e("s_lshl_b32 s46, s32, 1")
    e("s_add_u32 s46, s46, s37")
    e("s_lshl_b32 s47, s34, 5")
    e("v_lshl_add_u32 v3, v2, 1, s45")
    e("v_lshrrev_b32 v4, 5, v3")
    e("v_and_b32 v3, 31, v3")
    e("v_add_u32 v3, s47, v3")
    e(f"s_mov_b32 s38, {HS}")
    e("v_mul_lo_u32 v3, v3, s38")
    e(f"s_mul_i32 s48, s46, {QCH}")
    e(f"s_add_u32 s48, s48, {QOFF}")
    e(f"s_mul_i32 s49, s46, {CH}")
    e("v_mov_b32 v5, s49")
    e("v_mov_b32 v6, s48")
    e("v_cmp_eq_u32 vcc, 0, v4")
    e(f"v_mov_b32 v7, {f32(QSCALE)}")
    e("s_nop 0")
    e("v_cndmask_b32 v5, v5, v6, vcc")
    e("v_cndmask_b32 v212, 1.0, v7, vcc")
    e("v_add_u32 v5, v5, v3")
    e("v_lshl_add_u32 v5, v1, 2, v5")
    e("v_add_u32 v210, 2048, v5")
    e("v_lshrrev_b32 v6, 2, v1")
    e("v_mul_u32_u24 v6, 160, v6")
    e("v_and_b32 v7, 3, v1")
    e("v_lshl_add_u32 v6, v7, 3, v6")
    e("v_add3_u32 v6, v6, v3, s49")
    e(f"v_add_u32 v211, {2304+128}, v6")
    e(f"v_mov_b32 v7, {OOB:#x}")
    e("v_cmp_eq_u32 vcc, 2, v4")
    e("s_nop 1")
    e("v_cndmask_b32 v210, v210, v7, vcc")
    e("v_cndmask_b32 v211, v7, v211, vcc")
    e("v_cmp_eq_u32 vcc, 3, v2")
    e("s_nop 1")
    e("v_cndmask_b32 v210, v210, v7, vcc")
    e("v_cndmask_b32 v211, v211, v7, vcc")
    e(f"s_waitcnt vmcnt({npf})")
    e("v_mov_b32 v1, 0")
    e("s_nop 1")
    for j in range(9):
        e(f"v_dot2c_f32_bf16 v1, v{112+j}, v{124+j}")
    e("s_nop 2")
    for ctl in ("quad_perm:[1,0,3,2]", "quad_perm:[2,3,0,1]", "row_half_mirror", "row_mirror"):
        e(f"v_add_f32_dpp v1, v1, v1 {ctl} row_mask:0xf bank_mask:0xf")
        e("s_nop 1")
    e("v_mov_b32 v2, v1")
    e("s_nop 1")
    e("v_permlane16_swap_b32 v1, v2")
    e("s_nop 1")
    e("v_add_f32 v1, v1, v2")
    e(f"v_mul_f32 v1, {f32(-math.log2(math.e))}, v1")
    e("v_exp_f32 v1, v1")
    e("s_nop 0")
    e("v_add_f32 v1, 1.0, v1")
    e("v_rcp_f32 v1, v1")
    e("s_nop 0")
    e("v_sub_f32 v2, 1.0, v1")
    e("v_and_b32 v3, 31, v0")
    e("v_cmp_eq_u32 vcc, 0, v3")
    e("s_nop 1")
    e("v_cndmask_b32 v134, v7, v134, vcc")
    e(f"s_mov_b32 s38, {GATE}")
    e(f"s_mov_b32 s39, {GATE + 8192}")
    e("buffer_store_dword v1, v134, s[20:23], s38 offen")
    e("buffer_store_dword v2, v134, s[20:23], s39 offen")

    F = [112, 156]

    def reads(stage, ks, fb):
        slot = stage % 3
        rb_ = 204 if slot == 2 else 200
        so = K1_SLOT if slot == 1 else 0
        out = []
        xr = [f"ds_read_b128 {vr(fb+4*tt,4)}, v{rb_+ks} offset:{so + tt*2048}" for tt in range(4)]
        wr_ = []
        for tile in range(7):
            for r in range(2):
                if tile < 6:
                    a, off = rb_ + 2, so + ks * 13824 + r * 432 + (tile // 2) * 72 + (tile % 2) * 8
                else:
                    a, off = rb_ + 3, so + ks * 13824 + r * 432
                wr_.append(f"ds_read_b64_tr_b16 {vr(fb+16+4*tile+2*r,2)}, v{a} offset:{off}")
        out = xr[0:2] + wr_[0:2] + xr[2:4] + wr_[2:]
        return out

    def mfmas(fb, first):
        out = []
        for tile in range(7):
            for tt in range(4):
                acc = vr((tt * 7 + tile) * 4, 4)
                c = "0" if first else acc
                out.append(f"v_mfma_f32_16x16x32_bf16 {acc}, {vr(fb+16+4*tile,4)}, {vr(fb+4*tt,4)}, {c}")
        return out

    e("s_barrier")
    for r in reads(0, 0, F[0]):
        e(r)
    e("s_waitcnt lgkmcnt(0)")
    for ph in range(18):
        s, ks = divmod(ph, 2)
        m = mfmas(F[ks], ph == 0)
        if ks == 0:
            rd = reads(s, 1, F[1])
        elif s < 8:
            rd = reads(s + 1, 0, F[0])
        else:
            rd = []
        for i, x in enumerate(m):
            e(x)
            if i < len(rd):
                e(rd[i])
        if rd:
            e("s_waitcnt lgkmcnt(0)")
        if ks == 0 and s < 8:
            e("s_barrier")
    e("s_nop 7")
    T = 112
    for p in range(3):
        e(f"s_add_u32 s38, s45, {2*p}")
        e("s_lshr_b32 s39, s38, 5")
        e("s_and_b32 s38, s38, 31")
        e("s_add_u32 s38, s38, s47")
        e(f"s_mul_i32 s38, s38, {HS}")
        e("s_cmp_eq_u32 s39, 0")
        e("s_cselect_b32 s40, s48, s49")
        e("s_add_u32 s50, s38, s40")
        e("s_cmp_eq_u32 s39, 2")
        e(f"s_cbranch_scc1 .Lqkv_ep_v{p}")
        e("s_cmp_eq_u32 s39, 0")
        e(f"s_cbranch_scc0 .Lqkv_ep_k{p}")
        e(f"s_mov_b32 s40, {f32(QSCALE)}")
        for tt in range(4):
            for j in range(8):
                r = (tt * 7 + 2 * p) * 4 + j
                e(f"v_mul_f32 v{r}, s40, v{r}")
        e.label(f".Lqkv_ep_k{p}")
        for tt in range(4):
            r = (tt * 7 + 2 * p) * 4
            d = T + (p * 4 + tt) * 4
            for j in range(4):
                e(f"v_cvt_pk_bf16_f32 v{d+j}, v{r+2*j}, v{r+2*j+1}")
            e(f"buffer_store_dwordx4 {vr(d,4)}, v208, s[20:23], s50 offen offset:{(tt//2)*1024 + (tt%2)*256}")
        e(f"s_branch .Lqkv_ep_n{p}")
        e.label(f".Lqkv_ep_v{p}")
        e("s_add_u32 s50, s50, 2304")
        for tt in range(4):
            r = (tt * 7 + 2 * p) * 4
            d = T + (p * 4 + tt) * 4
            for j in range(4):
                e(f"v_cvt_pk_bf16_f32 v{d+j}, v{r+2*j}, v{r+2*j+1}")
            e(f"buffer_store_dwordx4 {vr(d,4)}, v209, s[20:23], s50 offen offset:{tt*640}")
        e.label(f".Lqkv_ep_n{p}")
    X = 160
    for tt in range(4):
        r = (tt * 7 + 6) * 4
        for j in range(4):
            e(f"v_mul_f32 v{r+j}, v212, v{r+j}")
        e(f"v_cvt_pk_bf16_f32 v{X+4*tt}, v{r}, v{r+1}")
        e(f"v_cvt_pk_bf16_f32 v{X+4*tt+2}, v{r+2}, v{r+3}")
        e(f"v_mov_b32 v{X+4*tt+1}, 0x3f803f80")
        e(f"v_mov_b32 v{X+4*tt+3}, 0x3f803f80")
    e(f"s_mov_b32 s40, {HS}")
    e("s_cmp_ge_u32 s45, 64")
    e("s_cbranch_scc1 .Lqkv_ex_v")
    for tt in range(4):
        e(f"buffer_store_dword v{X+4*tt}, v210, s[20:23], 0 offen offset:{tt*64}")
        e(f"buffer_store_dword v{X+4*tt+2}, v210, s[20:23], s40 offen offset:{tt*64}")
    e("s_cmp_ge_u32 s45, 60")
    e("s_cbranch_scc0 .Lqkv_end")
    e.label(".Lqkv_ex_v")
    for tt in range(4):
        e(f"buffer_store_dwordx2 {vr(X+4*tt,2)}, v211, s[20:23], 0 offen offset:{tt*640}")
        e(f"buffer_store_dwordx2 {vr(X+4*tt+2,2)}, v211, s[20:23], s40 offen offset:{tt*640}")
    e.label(".Lqkv_end")
    e("s_endpgm")
    descriptor(e, n, 216, 216)


X_, Y_ = 0, 32
OA, OB = 64, 80
Q1A, Q1B, Q2A, Q2B = 96, 100, 104, 106
K1LO, K1HI, K2R = 108, 112, 116
IDX, AK1, AK2, AV = 118, 119, 120, 121
VF = 124
GA, GB = 140, 141
LANE = 142
WO = 144
K2_LDS = KVSZ + CH


def rdV(j, off):
    return [f"ds_read_b64_tr_b16 {vr(VF+4*j+2*r,2)}, v{AV} offset:{off + j*640 + r*160}" for r in range(2)]


def pv(o, j, src):
    return f"v_smfmac_f32_32x32x32_bf16 {vr(o,16)}, {vr(VF+4*j,4)}, {vr(src+8*j,8)}, v{IDX}"


def attn_unit(e, which, ci, first=False):
    if which == "A":
        cur, oth, o, op, q1, q2 = X_, Y_, OA, OB, Q1B, Q2B
    else:
        cur, oth, o, op, q1, q2 = Y_, X_, OB, OA, Q1A, Q2A
    c0, c1 = ci * CH, (ci + 1) * CH
    A = which == "A"

    def ex(a, b):
        for i in range(a, b + 1):
            e(f"v_exp_f32 v{cur+i}, v{cur+i}")

    ex(0, 1)
    if not A:
        e("s_waitcnt lgkmcnt(2)")
    if not first:
        e(pv(op, 3, oth))
    if A:
        for r in rdV(3, c0):
            e(r)
    ex(2, 4)
    e(f"v_mfma_f32_32x32x4_2b_bf16 {vr(oth,32)}, {vr(K2R,2)}, {vr(q2,2)}, 0")
    if A:
        e(f"ds_read_b32 v{K2R}, v{AK2} offset:{c1}")
    ex(5, 12)
    if A:
        e("s_waitcnt lgkmcnt(3)")
    e(pv(o, 0, cur))
    if not A:
        for r in rdV(0, c1):
            e(r)
    ex(13, 17)
    e(pv(o, 1, cur))
    if not A:
        for r in rdV(1, c1):
            e(r)
    ex(18, 20)
    if not A:
        e("s_waitcnt lgkmcnt(4)")
    e(f"v_mfma_f32_32x32x16_bf16 {vr(oth,16)}, {vr(K1LO,4)}, {vr(q1,4)}, {vr(oth,16)}")
    if A:
        e(f"ds_read_b128 {vr(K1LO,4)}, v{AK1} offset:{c1}")
    ex(21, 23)
    e(f"v_mfma_f32_32x32x16_bf16 {vr(oth+16,16)}, {vr(K1HI,4)}, {vr(q1,4)}, {vr(oth+16,16)}")
    if A:
        e(f"ds_read_b128 {vr(K1HI,4)}, v{AK1} offset:{c1 + 1024}")
    ex(24, 26)
    e(pv(o, 2, cur))
    if not A:
        for r in rdV(2, c1):
            e(r)
    ex(27, 31)


def max_tree(e, dst, src, n, init):
    i = 0
    if not init:
        e(f"v_max3_f32 v{dst}, v{src}, v{src+1}, v{src+2}")
        i = 3
    while i + 1 < n:
        e(f"v_max3_f32 v{dst}, v{src+i}, v{src+i+1}, v{dst}")
        i += 2
    if i < n:
        e(f"v_max_f32 v{dst}, v{src+i}, v{dst}")


def set_m(e, pairs):
    for m, t, q in pairs:
        e(f"v_mov_b32 v{t}, v{m}")
    e("s_nop 1")
    for m, t, q in pairs:
        e(f"v_permlane32_swap_b32 v{m}, v{t}")
    e("s_nop 1")
    for m, t, q in pairs:
        e(f"v_max_f32 v{m}, v{m}, v{t}")
    for m, t, q in pairs:
        e(f"v_cvt_pk_bf16_f32 v{t}, v{m}, v{m}")
    for m, t, q in pairs:
        e(f"v_lshlrev_b32 v{t}, 16, v{t}")
    for m, t, q in pairs:
        e(f"v_sub_f32 v{m}, v{m}, v{t}")
    for m, t, q in pairs:
        e(f"v_cvt_pk_bf16_f32 v{q}, -v{t}, -v{m}")


def attn_addr_init(e):
    e(f"v_lshlrev_b32 v{AK1}, 4, v{LANE}")
    e(f"v_lshlrev_b32 v{AK2}, 2, v{LANE}")
    e(f"v_add_u32 v{AK2}, 2048, v{AK2}")
    e(f"v_mov_b32 v{AV}, v143")


def gen_attn(e, opt):
    n = "attn_kernel"
    header(e, n)
    e("s_cmp_ge_u32 s2, 256")
    e("s_cbranch_scc1 .Lattn_end")
    e("s_load_dwordx2 s[4:5], s[0:1], 72")
    e("s_load_dwordx2 s[6:7], s[0:1], 16")
    e("s_load_dwordx2 s[8:9], s[0:1], 40")
    e("v_lshrrev_b32 v1, 6, v0")
    e(f"v_and_b32 v{LANE}, 63, v0")
    e("v_readfirstlane_b32 s3, v1")
    e("s_and_b32 s20, s2, 7")
    e("s_lshl_b32 s20, s20, 3")
    e("s_lshr_b32 s21, s2, 5")
    e("s_add_u32 s20, s20, s21")
    e("s_lshr_b32 s22, s2, 3")
    e("s_and_b32 s22, s22, 3")
    e("s_lshl_b32 s22, s22, 3")
    e("s_add_u32 s22, s22, s3")
    e(f"s_mul_i32 s21, s20, {HS}")
    e(f"s_mul_i32 s23, s22, {QCH}")
    e("s_add_u32 s23, s23, s21")
    e(f"s_add_u32 s23, s23, {QOFF}")
    e(f"v_lshlrev_b32 v{AK1}, 4, v{LANE}")
    e(f"v_and_b32 v1, 31, v{LANE}")
    e("v_lshlrev_b32 v1, 2, v1")
    e("s_lshl_b32 s24, s3, 10")
    e("s_add_u32 s25, s21, s24")
    e("s_waitcnt lgkmcnt(0)")
    srd(e, 12, 4, WS_BYTES)
    e(f"buffer_load_dwordx4 {vr(Q1A,4)}, v{AK1}, s[12:15], s23 offen")
    e(f"buffer_load_dwordx4 {vr(Q1B,4)}, v{AK1}, s[12:15], s23 offen offset:1024")
    e(f"buffer_load_dword v{Q2A}, v1, s[12:15], s23 offen offset:2048")
    e(f"buffer_load_dword v{Q2B}, v1, s[12:15], s23 offen offset:2176")
    e("s_mov_b32 m0, s24")
    for r in range(19):
        e(f"buffer_load_dwordx4 v{AK1}, s[12:15], s25 offen lds")
        if r < 18:
            e("s_add_u32 m0, m0, 8192")
            e("s_add_u32 s25, s25, 8192")
    e("s_lshr_b32 s26, s20, 5")
    e("s_lshl_b32 s26, s26, 13")
    e("s_lshl_b32 s27, s22, 8")
    e("s_add_u32 s26, s26, s27")
    e(f"s_add_u32 s26, s26, {GATE}")
    e(f"buffer_load_dword v{GA}, v1, s[12:15], s26 offen")
    e(f"buffer_load_dword v{GB}, v1, s[12:15], s26 offen offset:128")
    e("s_lshl_b32 s32, s2, 3")
    e("s_add_u32 s32, s32, s3")
    e(f"s_mul_hi_u32 s33, s32, {-(-2**32//180)}")
    e("s_mul_i32 s34, s33, 180")
    e("s_sub_u32 s34, s32, s34")
    e(f"s_mul_hi_u32 s35, s34, {-(-2**32//5)}")
    e("s_mul_i32 s36, s35, 5")
    e("s_sub_u32 s36, s34, s36")
    e(f"v_and_b32 v2, 15, v{LANE}")
    e(f"v_lshrrev_b32 v3, 4, v{LANE}")
    e("v_lshrrev_b32 v4, 2, v2")
    e("v_and_b32 v5, 3, v2")
    e("v_lshl_add_u32 v4, v4, 3, v5")
    e("s_lshr_b32 s37, s36, 1")
    e("s_lshl_b32 s37, s37, 5")
    e("s_and_b32 s38, s36, 1")
    e("s_lshl_b32 s38, s38, 2")
    e("s_add_u32 s37, s37, s38")
    e("s_mul_i32 s38, s33, 72")
    e("s_add_u32 s37, s37, s38")
    e("s_cmp_eq_u32 s36, 4")
    e("s_cselect_b64 vcc, -1, 0")
    e("s_cselect_b32 s39, 8, 16")
    e("s_cmp_lt_u32 s32, 1440")
    e("s_cselect_b32 s39, s39, 0")
    e("v_cndmask_b32 v4, v4, v2, vcc")
    e("v_add_u32 v4, s37, v4")
    e("s_cmp_lt_u32 s35, 32")
    e("s_cbranch_scc0 .Lattn_wo_ex")
    e("s_lshr_b32 s40, s35, 4")
    e("s_and_b32 s41, s35, 15")
    e("s_mul_i32 s41, s41, 36")
    e("v_lshrrev_b32 v5, 1, v3")
    e("v_mul_u32_u24 v5, 20, v5")
    e("v_and_b32 v6, 1, v3")
    e("v_lshl_add_u32 v5, v6, 3, v5")
    e(f"s_mov_b32 s42, {4*1152}")
    e("s_branch .Lattn_wo_j")
    e.label(".Lattn_wo_ex")
    e("s_sub_u32 s41, s35, 32")
    e("s_lshr_b32 s40, s41, 1")
    e("s_and_b32 s41, s41, 1")
    e("s_mul_i32 s41, s41, 288")
    e("s_add_u32 s41, s41, 16")
    e("v_mul_u32_u24 v5, 72, v3")
    e(f"s_mov_b32 s42, {36*1152}")
    e.label(".Lattn_wo_j")
    e("v_add_u32 v5, s41, v5")
    e("v_mul_u32_u24 v5, 1152, v5")
    e("v_lshl_add_u32 v5, v4, 1, v5")
    e("v_cmp_gt_u32 vcc, s39, v2")
    e(f"v_mov_b32 v6, {OOB:#x}")
    e("s_cmp_eq_u32 s40, 0")
    e("s_cselect_b32 s16, s6, s8")
    e("s_cselect_b32 s17, s7, s9")
    e(f"s_mov_b32 s18, {576*1152}")
    e("s_mov_b32 s19, 0x00020000")
    e("v_cndmask_b32 v5, v6, v5, vcc")
    for j in range(8):
        so = "0" if j < 4 else "s42"
        e(f"buffer_load_ushort v{WO+j}, v5, s[16:19], {so} offen offset:{(j%4)*1152}")
    e(f"v_lshrrev_b32 v4, 1, v3")
    e("v_mul_u32_u24 v4, 320, v4")
    e("v_lshrrev_b32 v5, 2, v2")
    e("v_and_b32 v6, 1, v2")
    e("v_bfe_u32 v7, v2, 1, 1")
    e("v_lshl_add_u32 v6, v6, 1, v7")
    e("v_lshlrev_b32 v6, 3, v6")
    e("v_lshl_add_u32 v6, v5, 5, v6")
    e("v_lshlrev_b32 v7, 3, v5")
    e("v_add_u32 v7, 128, v7")
    e("v_and_b32 v8, 1, v3")
    e("v_cmp_eq_u32 vcc, 0, v8")
    e("s_nop 1")
    e("v_cndmask_b32 v6, v7, v6, vcc")
    e("v_add_u32 v4, 2304, v4")
    e("v_add_u32 v143, v4, v6")
    attn_addr_init(e)
    e(f"v_mov_b32 v{IDX}, 0xdddddddd")
    e(f"v_mov_b32 v{K2R+1}, 0x3f803f80")
    for i in range(32):
        e(f"v_mov_b32 v{OA+i}, 0")
    e("s_mov_b32 s31, 0")
    NV = 4 + 19 + 2 + 8
    e(f"s_waitcnt vmcnt({NV - 6})")
    e("s_barrier")
    e(f"ds_read_b128 {vr(K1LO,4)}, v{AK1}")
    e(f"ds_read_b128 {vr(K1HI,4)}, v{AK1} offset:1024")
    e(f"ds_read_b32 v{K2R}, v{AK2}")
    for j in range(3):
        for r in rdV(j, 0):
            e(r)
    e("s_waitcnt lgkmcnt(8)")
    e(f"v_mfma_f32_32x32x16_bf16 {vr(X_,16)}, {vr(K1LO,4)}, {vr(Q1A,4)}, 0")
    e(f"v_mfma_f32_32x32x16_bf16 {vr(Y_,16)}, {vr(K1LO,4)}, {vr(Q1B,4)}, 0")
    e("s_waitcnt lgkmcnt(7)")
    e(f"v_mfma_f32_32x32x16_bf16 {vr(X_+16,16)}, {vr(K1HI,4)}, {vr(Q1A,4)}, 0")
    e("s_nop 9")
    max_tree(e, Y_ + 16, X_, 16, False)
    max_tree(e, Y_ + 17, Y_, 16, False)
    set_m(e, [(Y_ + 16, Y_ + 18, Q2A + 1), (Y_ + 17, Y_ + 19, Q2B + 1)])
    e("s_waitcnt lgkmcnt(0)")
    e("s_nop 0")
    e(f"v_mfma_f32_32x32x4_2b_bf16 {vr(X_,32)}, {vr(K2R,2)}, {vr(Q2A,2)}, {vr(X_,32)}")
    e("s_nop 15")
    e("s_nop 3")
    for ci in range(8):
        if ci == 2:
            e(f"s_waitcnt vmcnt({NV - 9})")
            e("s_barrier")
        if ci == 7:
            e("s_waitcnt vmcnt(0)")
            e("s_barrier")
            for j in range(4):
                e(f"v_lshl_or_b32 v{WO+j}, v{WO+2*j+1}, 16, v{WO+2*j}")
            e("s_lshl_b32 s33, s32, 10")
            e(f"s_add_u32 s33, s33, {WOP}")
            e("s_cmp_lt_u32 s32, 1440")
            e("s_cbranch_scc0 .Lattn_wo_skip")
            e(f"buffer_store_dwordx4 {vr(WO,4)}, v{AK1}, s[12:15], s33 offen")
            e.label(".Lattn_wo_skip")
        attn_unit(e, "A", ci, first=(ci == 0))
        attn_unit(e, "B", ci)
    for a in (AK1, AK2, AV):
        e(f"v_add_u32 v{a}, {8*CH}, v{a}")
    e("s_mov_b32 s30, 3")
    e.raw(".p2align 6")
    e.label(".Lattn_loop")
    for ci in range(8):
        attn_unit(e, "A", ci)
        attn_unit(e, "B", ci)
    for a in (AK1, AK2, AV):
        e(f"v_add_u32 v{a}, {8*CH}, v{a}")
    e("s_sub_u32 s30, s30, 1")
    e("s_cmp_lg_u32 s30, 0")
    e("s_cbranch_scc1 .Lattn_loop")
    e(pv(OB, 3, Y_))
    e("s_waitcnt lgkmcnt(0)")
    e("v_mov_b32 v0, 0")
    e("v_mov_b32 v1, 0")
    for i in range(10):
        e(f"v_fmac_f32 v0, 0, v{OA+i}")
    e("s_nop 1")
    for i in range(10):
        e(f"v_fmac_f32 v1, 0, v{OB+i}")
    e(f"v_add_f32 v0, v0, v{OA+10}")
    e(f"v_add_f32 v1, v1, v{OB+10}")
    e(f"s_mov_b32 s34, {f32(2.0**60)}")
    e(f"s_mov_b32 s35, {f32(2.0**-60)}")
    e("v_cmp_nge_f32 s[36:37], s34, v0")
    e("v_cmp_nle_f32 s[38:39], s35, v0")
    e("v_cmp_nge_f32 s[40:41], s34, v1")
    e("v_cmp_nle_f32 s[42:43], s35, v1")
    if opt.get("force_fallback"):
        e("s_mov_b64 s[36:37], -1")
    e("s_or_b64 s[36:37], s[36:37], s[38:39]")
    e("s_or_b64 s[40:41], s[40:41], s[42:43]")
    e("s_or_b64 s[36:37], s[36:37], s[40:41]")
    e("s_cselect_b32 s34, 1, 0")
    e("s_cmp_gt_u32 s34, s31")
    e("s_cbranch_scc1 .Lattn_fallback")
    e(f"v_rcp_f32 v0, v{OA+10}")
    e(f"v_rcp_f32 v1, v{OB+10}")
    e("s_waitcnt vmcnt(0)")
    e(f"v_mul_f32 v0, v0, v{GA}")
    e(f"v_mul_f32 v1, v1, v{GB}")
    for i in range(10):
        e(f"v_mul_f32 v{OA+i}, v0, v{OA+i}")
    for i in range(10):
        e(f"v_mul_f32 v{OB+i}, v1, v{OB+i}")
    for j in range(5):
        e(f"v_cvt_pk_bf16_f32 v{8+j}, v{OA+2*j}, v{OA+2*j+1}")
    for j in range(5):
        e(f"v_cvt_pk_bf16_f32 v{16+j}, v{OB+2*j}, v{OB+2*j+1}")
    e(f"v_cmp_gt_u32 vcc, 32, v{LANE}")
    e(f"v_lshlrev_b32 v2, 4, v{LANE}")
    e("s_lshl_b32 s34, s20, 16")
    e("s_lshl_b32 s35, s22, 11")
    e("s_add_u32 s34, s34, s35")
    e(f"s_add_u32 s34, s34, {O1}")
    e("v_cndmask_b32 v12, v20, v12, vcc")
    e("s_lshr_b32 s35, s20, 2")
    e("s_lshl_b32 s35, s35, 15")
    e("s_and_b32 s36, s20, 3")
    e("s_lshl_b32 s36, s36, 2")
    e("s_add_u32 s35, s35, s36")
    e("s_lshl_b32 s36, s22, 10")
    e("s_add_u32 s35, s35, s36")
    e(f"s_add_u32 s35, s35, {O2}")
    e("buffer_store_dwordx4 v[8:11], v2, s[12:15], s34 offen")
    e("buffer_store_dwordx4 v[16:19], v2, s[12:15], s34 offen offset:1024")
    e("buffer_store_dword v12, v2, s[12:15], s35 offen")
    e.label(".Lattn_end")
    e("s_endpgm")

    e.label(".Lattn_fallback")
    e("s_mov_b32 s31, 1")
    attn_addr_init(e)
    MA, MB = OA, OA + 1
    e(f"v_mov_b32 v{MA}, 0xff800000")
    e(f"v_mov_b32 v{MB}, 0xff800000")
    e(f"v_mov_b32 v{Q2A+1}, 0")
    e(f"v_mov_b32 v{Q2B+1}, 0")
    e("s_mov_b32 s30, 32")
    e.label(".Lattn_maxloop")
    e(f"ds_read_b128 {vr(K1LO,4)}, v{AK1}")
    e(f"ds_read_b128 {vr(K1HI,4)}, v{AK1} offset:1024")
    e(f"ds_read_b32 v{K2R}, v{AK2}")
    e("s_waitcnt lgkmcnt(0)")
    for buf, q1 in ((X_, Q1A), (Y_, Q1B)):
        e(f"v_mfma_f32_32x32x16_bf16 {vr(buf,16)}, {vr(K1LO,4)}, {vr(q1,4)}, 0")
        e(f"v_mfma_f32_32x32x16_bf16 {vr(buf+16,16)}, {vr(K1HI,4)}, {vr(q1,4)}, 0")
    e("s_nop 10")
    e(f"v_mfma_f32_32x32x4_2b_bf16 {vr(X_,32)}, {vr(K2R,2)}, {vr(Q2A,2)}, {vr(X_,32)}")
    e(f"v_mfma_f32_32x32x4_2b_bf16 {vr(Y_,32)}, {vr(K2R,2)}, {vr(Q2B,2)}, {vr(Y_,32)}")
    e("s_nop 15")
    e("s_nop 4")
    max_tree(e, MA, X_, 32, True)
    max_tree(e, MB, Y_, 32, True)
    e(f"v_add_u32 v{AK1}, {CH}, v{AK1}")
    e(f"v_add_u32 v{AK2}, {CH}, v{AK2}")
    e("s_sub_u32 s30, s30, 1")
    e("s_cmp_lg_u32 s30, 0")
    e("s_cbranch_scc1 .Lattn_maxloop")
    set_m(e, [(MA, OA + 2, Q2A + 1), (MB, OA + 3, Q2B + 1)])
    attn_addr_init(e)
    e(f"ds_read_b128 {vr(K1LO,4)}, v{AK1}")
    e(f"ds_read_b128 {vr(K1HI,4)}, v{AK1} offset:1024")
    e(f"ds_read_b32 v{K2R}, v{AK2}")
    for j in range(3):
        for r in rdV(j, 0):
            e(r)
    for i in range(32):
        e(f"v_mov_b32 v{OA+i}, 0")
    for i in range(8):
        e(f"v_mov_b32 v{Y_+24+i}, 0")
    e("s_waitcnt lgkmcnt(0)")
    e(f"v_mfma_f32_32x32x16_bf16 {vr(X_,16)}, {vr(K1LO,4)}, {vr(Q1A,4)}, 0")
    e(f"v_mfma_f32_32x32x16_bf16 {vr(X_+16,16)}, {vr(K1HI,4)}, {vr(Q1A,4)}, 0")
    e("s_nop 10")
    e(f"v_mfma_f32_32x32x4_2b_bf16 {vr(X_,32)}, {vr(K2R,2)}, {vr(Q2A,2)}, {vr(X_,32)}")
    e("s_nop 15")
    e("s_nop 4")
    e("s_mov_b32 s30, 4")
    e("s_branch .Lattn_loop")
    descriptor(e, n, 152, 152)


K3_LDS = 81920


def gen_out(e, opt):
    n = "oproj_kernel"
    header(e, n)
    e("s_cmp_ge_u32 s2, 256")
    e("s_cbranch_scc1 .Lout_end")
    e("s_load_dwordx2 s[4:5], s[0:1], 72")
    e("s_load_dwordx2 s[6:7], s[0:1], 56")
    e("v_lshrrev_b32 v1, 6, v0")
    e("v_and_b32 v0, 63, v0")
    e("v_readfirstlane_b32 s3, v1")
    e("s_and_b32 s20, s2, 7")
    e("s_lshr_b32 s21, s2, 3")
    e("s_and_b32 s22, s20, 3")
    e("s_lshl_b32 s22, s22, 3")
    e("s_and_b32 s23, s21, 7")
    e("s_add_u32 s22, s22, s23")
    e("s_lshr_b32 s23, s20, 2")
    e("s_lshl_b32 s23, s23, 2")
    e("s_lshr_b32 s24, s21, 3")
    e("s_add_u32 s23, s23, s24")
    e("v_and_b32 v1, 15, v0")
    e("v_lshrrev_b32 v2, 4, v0")
    e("v_lshrrev_b32 v3, 1, v2")
    e("v_lshlrev_b32 v3, 16, v3")
    e("v_and_b32 v4, 1, v2")
    e("v_lshl_add_u32 v3, v4, 9, v3")
    e("v_lshl_add_u32 v216, v1, 4, v3")
    e("v_lshlrev_b32 v3, 15, v2")
    e("v_lshl_add_u32 v217, v1, 4, v3")
    e("v_lshlrev_b32 v218, 4, v0")
    e("v_add_u32 v3, 4096, v218")
    e(f"v_mov_b32 v4, {OOB:#x}")
    e("v_cmp_gt_u32 vcc, 8, v1")
    e("s_lshl_b32 s24, s3, 20")
    e("s_lshl_b32 s25, s22, 11")
    e("v_cndmask_b32 v219, v4, v3, vcc")
    e("s_add_u32 s24, s24, s25")
    e(f"s_add_u32 s24, s24, {O1}")
    e("s_lshl_b32 s25, s3, 17")
    e("s_lshl_b32 s26, s22, 10")
    e("s_add_u32 s25, s25, s26")
    e(f"s_add_u32 s25, s25, {O2}")
    e("s_mul_i32 s26, s23, 180")
    e("s_mul_i32 s27, s3, 40")
    e("s_add_u32 s27, s27, s26")
    e("s_lshl_b32 s27, s27, 10")
    e(f"s_add_u32 s27, s27, {WOP}")
    e("s_mul_i32 s28, s3, 5")
    e("s_add_u32 s28, s28, s26")
    e("s_add_u32 s28, s28, 160")
    e("s_lshl_b32 s28, s28, 10")
    e(f"s_add_u32 s28, s28, {WOP}")
    e("v_mov_b32 v220, v0")
    e("v_mov_b32 v221, v1")
    e("v_mov_b32 v222, v2")
    e("s_waitcnt lgkmcnt(0)")
    srd(e, 12, 4, WS_BYTES)
    srd(e, 16, 6, 2048 * 1152)

    def loads(j):
        fb = (j % 6) * 36
        for k in range(5):
            if k < 4:
                if j < 8:
                    e(f"buffer_load_dwordx4 {vr(fb+4*k,4)}, v216, s[12:15], s24 offen offset:{(k//2)*1024+(k%2)*256}")
                else:
                    e(f"buffer_load_dwordx4 {vr(fb+4*k,4)}, v217, s[12:15], s25 offen offset:{k*256}")
            so = "s27" if j < 8 else "s28"
            if k < 4:
                e(f"buffer_load_dwordx4 {vr(fb+16+4*k,4)}, v218, s[12:15], {so} offen offset:{k*1024}")
            else:
                e(f"buffer_load_dwordx4 {vr(fb+16+4*k,4)}, v219, s[12:15], {so} offen")
        if j < 7:
            e("s_add_u32 s24, s24, 131072")
            e("s_add_u32 s27, s27, 5120")

    for j in range(6):
        loads(j)
    for j in range(9):
        issued = min(8, 5 + j)
        e(f"s_waitcnt vmcnt({9*(issued - j)})")
        fb = (j % 6) * 36
        for tile in range(5):
            for tt in range(4):
                acc = ar((tt * 5 + tile) * 4, 4)
                c = "0" if j == 0 else acc
                e(f"v_mfma_f32_16x16x32_bf16 {acc}, {vr(fb+16+4*tile,4)}, {vr(fb+4*tt,4)}, {c}")
        if j + 6 <= 8:
            loads(j + 6)
    e("s_mul_i32 s29, s3, 20480")
    e("v_add_u32 v0, s29, v218")
    e("s_mul_i32 s29, s3, 5120")
    e("v_add_u32 v1, s29, v218")
    e("v_add_u32 v2, 40960, v1")
    e("s_nop 3")
    for k in range(20):
        e(f"ds_write_b128 v0, {ar(4*k,4)} offset:{k*1024}")
    e("s_waitcnt lgkmcnt(0)")
    e("s_barrier")
    for tile in range(5):
        for src in range(4):
            a = 1 if src < 2 else 2
            e(f"ds_read_b128 {vr(8 + (tile*4+src)*4, 4)}, v{a} offset:{(src%2)*20480 + tile*1024}")
    e("s_lshl_b32 s29, s22, 6")
    e("s_lshl_b32 s30, s3, 4")
    e("s_add_u32 s29, s29, s30")
    e("v_add_u32 v3, s29, v221")
    e("v_mul_u32_u24 v3, 1152, v3")
    e("s_mul_i32 s30, s23, 144")
    e("v_lshl_add_u32 v4, v222, 4, v3")
    e("v_lshl_add_u32 v5, v222, 3, v3")
    e(f"v_mov_b32 v6, {OOB:#x}")
    e("v_cmp_gt_u32 vcc, 2, v222")
    e("s_nop 1")
    e("v_cndmask_b32 v5, v6, v5, vcc")
    for tile in range(5):
        e(f"s_waitcnt lgkmcnt({min(15, 16 - 4*tile)})")
        b = 8 + tile * 16
        for h in range(2):
            e(f"v_pk_add_f32 {vr(b+2*h,2)}, {vr(b+2*h,2)}, {vr(b+4+2*h,2)}")
            e(f"v_pk_add_f32 {vr(b+8+2*h,2)}, {vr(b+8+2*h,2)}, {vr(b+12+2*h,2)}")
        for h in range(2):
            e(f"v_pk_add_f32 {vr(b+2*h,2)}, {vr(b+2*h,2)}, {vr(b+8+2*h,2)}")
        d = 96 + (tile // 2) * 4 + (tile % 2) * 2
        e(f"v_cvt_pk_bf16_f32 v{d}, v{b}, v{b+1}")
        e(f"v_cvt_pk_bf16_f32 v{d+1}, v{b+2}, v{b+3}")
        if tile in (1, 3):
            e(f"buffer_store_dwordx4 {vr(96+(tile//2)*4,4)}, v4, s[16:19], s30 offen offset:{(tile//2)*64}")
        if tile == 4:
            e(f"buffer_store_dwordx2 {vr(104,2)}, v5, s[16:19], s30 offen offset:128")
    e.label(".Lout_end")
    e("s_endpgm")
    descriptor(e, n, 224 + 80, 224)


HEAD = """; Kernarg layout for this problem (80 bytes, ptrs only, base s[0:1]):
"""


def generate(opt=None):
    opt = opt or {}
    e = E()
    e.raw(HEAD.rstrip())
    e.raw(f"; @launch kernel=qkv_kernel grid=(256,1,1) block=(512,1,1) lds={K1_LDS}")
    e.raw(f"; @launch kernel=attn_kernel grid=(256,1,1) block=(512,1,1) lds={K2_LDS}")
    e.raw(f"; @launch kernel=oproj_kernel grid=(256,1,1) block=(256,1,1) lds={K3_LDS}")
    e.raw('.amdgcn_target "amdgcn-amd-amdhsa--gfx950"')
    gen_qkv(e, opt)
    gen_attn(e, opt)
    gen_out(e, opt)
    return e.text()


if __name__ == "__main__":
    out = f"cdna_kernels/{NAME}.s"
    opt = {}
    for a in sys.argv[1:]:
        if a.startswith("-o="):
            out = a[3:]
        else:
            k, v = a.split("=")
            opt[k] = int(v)
    open(out, "w").write(generate(opt))
    print("wrote", out)
```

```python
import math, struct, sys

NAME = "gated_mix__softmax_full_mha__softmax_full_mha__prompt"

CH = 4864
VX, VM = 2176, 2816
KVSZ = 32 * CH
QCH = 2304
QOFF = KVSZ
HS = KVSZ + 32 * QCH
GATE = 64 * HS
FLG = GATE + 16384
F1L, F1G, F2, FW, FO = FLG, FLG + 1024, FLG + 2048, FLG + 3072, FLG + 4096
O1 = 15 * 1024 * 1024
O2 = O1 + 64 * 65536
WOP = O2 + 64 * 8192
WSET = 23040
WS_BYTES = 268435456
STAMP = 32 * 1024 * 1024
OOB = 0x80000000
SPIN = 400000

QSCALE = (18 ** -0.5) * math.log2(math.e)
WSLOT, XSLOT, XB = 32768, 16384, 98304
LDS_BYTES = KVSZ + CH

LANE, AV0, T0, T1 = 252, 253, 254, 255
WG = 220
GX = 152
PIECE = 21
WS = "s[8:11]"


def f32(x):
    return "0x%08x" % struct.unpack("<I", struct.pack("<f", x))[0]


class E:
    def __init__(s, opt):
        s.l = []
        s.opt = opt
        s.n = 0

    def __call__(s, x):
        s.l.append("    " + x)

    def label(s, x):
        s.l.append(x + ":")

    def raw(s, x):
        s.l.append(x)

    def uid(s, p):
        s.n += 1
        return f".L{p}{s.n}"

    def stamp(s, slot):
        m = s.opt.get("stamp")
        if m == 3:
            if slot not in (0, 13) and slot not in s.opt.get("keep", ()):
                return
            m = 1
        if m:
            b = 72 + 2 * slot
            s(f"{'s_memrealtime' if m == 1 else 's_memtime'} s[{b}:{b+1}]")
            s("s_waitcnt lgkmcnt(0)")

    def text(s):
        return "\n".join(s.l) + "\n"


def vr(b, n):
    return f"v[{b}:{b+n-1}]" if n > 1 else f"v{b}"


def srd(e, d, ptr, nbytes):
    e(f"s_mov_b32 s{d}, s{ptr}")
    e(f"s_mov_b32 s{d+1}, s{ptr+1}")
    e(f"s_mov_b32 s{d+2}, {nbytes}")
    e(f"s_mov_b32 s{d+3}, 0x00020000")


def poll(e, vdst, vaddr, rsrc, soff, cmp, mask, first_loaded=False, nap=0, depth=0):
    top, done, ld = e.uid("poll"), e.uid("polld"), e.uid("polll")
    e(f"s_mov_b32 s70, {SPIN}")
    if isinstance(mask, str):
        e(f"s_mov_b32 s68, {mask}")
        e("s_mov_b32 s69, 0")
    else:
        e(f"s_mov_b32 s68, {mask & 0xffffffff:#x}")
        e(f"s_mov_b32 s69, {mask >> 32:#x}")
    if depth:
        if not first_loaded:
            e(f"buffer_load_dword v{vdst}, v{vaddr}, {rsrc}, {soff} offen sc1")
        e("s_waitcnt vmcnt(0)")
        e(cmp)
        e("s_and_b64 vcc, vcc, s[68:69]")
        e("s_cmp_eq_u64 vcc, s[68:69]")
        e(f"s_cbranch_scc1 {done}")
        for _ in range(depth):
            e(f"buffer_load_dword v{vdst}, v{vaddr}, {rsrc}, {soff} offen sc1")
            if nap:
                e(f"s_sleep {nap}")
    elif first_loaded:
        e(f"s_branch {ld}")
    e.label(top)
    e(f"buffer_load_dword v{vdst}, v{vaddr}, {rsrc}, {soff} offen sc1")
    if first_loaded and not depth:
        e.label(ld)
    e(f"s_waitcnt vmcnt({depth})")
    e(cmp)
    e("s_and_b64 vcc, vcc, s[68:69]")
    e("s_cmp_eq_u64 vcc, s[68:69]")
    e(f"s_cbranch_scc1 {done}")
    if nap:
        e(f"s_sleep {nap}")
    e("s_sub_u32 s70, s70, 1")
    e("s_cmp_lg_u32 s70, 0")
    e(f"s_cbranch_scc1 {top}")
    e.label(done)


def wo_job_addr(e, dst, s_tile, s_row, is_extra_sel, s_valid):
    e(f"s_lshr_b32 s60, {s_tile}, 1")
    e("s_lshl_b32 s60, s60, 5")
    e(f"s_and_b32 s61, {s_tile}, 1")
    e("s_lshl_b32 s61, s61, 2")
    e("s_add_u32 s60, s60, s61")
    e("s_add_u32 s60, s60, s58")
    e(f"s_cmp_eq_u32 {s_tile}, 4")
    e("s_cselect_b64 vcc, -1, 0")
    e("s_cselect_b32 s61, 8, 16")
    e(f"s_min_u32 s61, s61, {s_valid}")
    e("v_cndmask_b32 v4, v3, v1, vcc")
    e("v_add_u32 v4, s60, v4")
    e(f"v_cndmask_b32 v5, v6, v7, {is_extra_sel}")
    e(f"v_add_u32 v5, {s_row}, v5")
    e("v_mul_u32_u24 v5, 1152, v5")
    e("v_lshl_add_u32 v5, v4, 1, v5")
    e("v_cmp_gt_u32 vcc, s61, v1")
    e(f"v_mov_b32 v4, {OOB:#x}")
    e("s_nop 0")
    e(f"v_cndmask_b32 v{dst}, v4, v5, vcc")


def w_prefetch_addr(e, dst):
    L = f"v{LANE}"
    e("s_mul_i32 s52, s5, 2")
    e(f"v_mul_u32_u24 v2, 57, {L}")
    e("v_lshrrev_b32 v2, 9, v2")
    e("v_mul_u32_u24 v3, 9, v2")
    e(f"v_sub_u32 v3, {L}, v3")
    e("v_add_u32 v2, s52, v2")
    e("v_mul_u32_u24 v4, 11, v3")
    e("v_lshrrev_b32 v4, 5, v4")
    e("v_mul_u32_u24 v4, 768, v4")
    e("v_lshl_add_u32 v4, v3, 7, v4")
    e("v_mul_u32_u24 v2, 3456, v2")
    e("s_and_b32 s52, s4, 3")
    e("s_lshl_b32 s52, s52, 8")
    e("v_add3_u32 v2, v2, v4, s52")
    e(f"v_cmp_gt_u32 vcc, 18, {L}")
    e(f"v_mov_b32 v5, {OOB:#x}")
    e(f"v_and_b32 v3, {1 if e.opt.get('xpf') else 3}, {L}")
    if e.opt.get("xpf"):
        e("v_or_b32 v3, 2, v3")
    e("v_cndmask_b32 v2, v5, v2, vcc")
    e("v_cmp_eq_u32 vcc, s3, v3")
    e("s_nop 1")
    e(f"v_cndmask_b32 v{dst}, v5, v2, vcc")


def gen_loader(e):
    opt = e.opt
    L = f"v{LANE}"
    e("s_sub_u32 s50, s3, 4")
    if opt.get("lprio"):
        e(f"s_setprio {opt['lprio']}")
    e(f"v_lshrrev_b32 v1, 3, {L}")
    e(f"v_and_b32 v2, 7, {L}")
    e(f"v_lshrrev_b32 v3, 4, {L}")
    e("v_xor_b32 v4, v2, v3")
    e("v_xor_b32 v5, 4, v4")
    e("s_lshl_b32 s51, s48, 7")
    if opt.get("x_samex"):
        e("s_mov_b32 s51, 0")
    e("s_lshl_b32 s52, s50, 5")
    e("s_add_u32 s51, s51, s52")
    e("v_add_u32 v1, s51, v1")
    e("v_mul_u32_u24 v1, 1152, v1")
    for j in range(4):
        e(f"v_lshl_add_u32 v{10+j}, v{4 + j % 2}, 4, v1")
        if j:
            e(f"v_add_u32 v{10+j}, {j*8*1152}, v{10+j}")
    e("s_lshl_b32 s56, s50, 12")
    e(f"s_add_u32 s56, s56, {XB}")
    e("s_lshl_b32 s57, s50, 10")
    e("s_and_b32 s52, s4, 3")
    e("s_mul_i32 s52, s52, 288")
    e("s_and_b32 s53, s52, 0xffc0")
    e("s_add_u32 s54, s52, 144")
    e("s_and_b32 s54, s54, 0xffc0")
    e("s_add_u32 s54, s54, 1152")
    e(f"s_mov_b32 s55, {2304-192}")
    e("s_cmp_eq_u32 s49, 0")
    e("s_cselect_b32 s54, s53, s54")
    e(f"s_cselect_b32 s55, {1152-320}, s55")
    e("s_cselect_b32 s58, 20, 12")
    e("s_add_u32 s55, s55, s53")
    e(f"v_lshrrev_b32 v1, 5, {L}")
    e("v_lshlrev_b32 v2, 1, v1")
    e(f"v_xor_b32 v2, {L}, v2")
    e("s_and_b32 s59, s50, 1")
    e("s_lshl_b32 s59, s59, 2")
    e("v_subrev_u32 v2, s59, v2")
    e("s_lshl_b32 s59, s50, 1")
    e("v_add_u32 v1, s59, v1")
    e("v_mul_u32_u24 v1, 3456, v1")
    e("v_mov_b32 v5, s54")
    e("v_mov_b32 v6, s55")
    for h in range(2):
        if h:
            e("v_subrev_u32 v2, 8, v2")
        e("v_and_b32 v3, 31, v2")
        e("v_cmp_gt_u32 vcc, s58, v3")
        e("v_lshl_add_u32 v3, v3, 4, v1")
        e("s_nop 0")
        e("v_cndmask_b32 v4, v6, v5, vcc")
        e(f"v_add_u32 v{14+h}, v3, v4")

    def issue_x(stage):
        e(f"s_mov_b32 s60, {stage*128}")
        for j in range(4):
            e(f"s_add_u32 m0, s56, {(stage % 3) * XSLOT + j*1024}")
            e("s_nop 0")
            e(f"buffer_load_dwordx4 v{10+j}, s[12:15], s60 offen lds")

    def issue_w(stage, js):
        for j in js:
            e(f"s_add_u32 m0, s57, {(stage % 3) * WSLOT + j*4096}")
            e(f"s_mov_b32 s61, {(stage*64 + j*8)*3456}")
            e(f"buffer_load_dwordx4 v{14 + j % 2}, s[16:19], s61 offen lds")

    def touch():
        e("s_lshl_b32 s58, s4, 3")
        e("s_lshr_b32 s59, s5, 2")
        e("s_add_u32 s58, s58, s59")
        e(f"s_mul_i32 s58, s58, {HS}")
        e("s_and_b32 s59, s5, 3")
        e("s_lshl_b32 s59, s59, 2")
        e("s_add_u32 s59, s59, s50")
        e(f"s_mul_i32 s60, s59, {2*QCH}")
        e(f"s_add_u32 s60, s60, {QOFF}")
        e("s_mul_i32 s59, s59, 2560")
        e(f"s_sub_u32 s59, s59, {36*128}")
        e("v_mov_b32 v1, s59")
        e("v_mov_b32 v2, s60")
        e(f"v_cmp_gt_u32 vcc, 36, {L}")
        e(f"v_mov_b32 v3, {OOB:#x}")
        e("s_nop 0")
        e("v_cndmask_b32 v1, v1, v2, vcc")
        e(f"v_lshl_add_u32 v1, {L}, 7, v1")
        e(f"v_cmp_gt_u32 vcc, 56, {L}")
        e("s_nop 1")
        e("v_cndmask_b32 v1, v3, v1, vcc")
        e(f"buffer_load_dword v23, v1, {WS}, s58 offen sc1{' nt' if opt.get('tnt') else ''}")

    def counter_load():
        srd(e, 24, 44, 256)
        e(f"v_lshlrev_b32 v57, 6, {L}")
        e("buffer_load_dword v58, v57, s[24:27], 0 offen sc1")

    def gate_loads():
        srd(e, 20, 40, 1152)
        e("s_lshl_b32 s52, s4, 8")
        e("s_lshl_b32 s53, s5, 3")
        e("s_add_u32 s52, s52, s53")
        e("s_lshl_b32 s53, s50, 1")
        e("s_add_u32 s52, s52, s53")
        e(f"v_lshrrev_b32 v1, 5, {L}")
        e("v_add_u32 v1, s52, v1")
        e(f"v_and_b32 v4, 31, {L}")
        e("v_mul_u32_u24 v2, 36, v4")
        e("v_mov_b32 v3, 1152")
        e("v_mad_u32_u24 v3, v1, v3, v2")
        e(f"buffer_load_dwordx4 {vr(GX,4)}, v3, s[12:15], 0 offen")
        e(f"buffer_load_dwordx4 {vr(GX+4,4)}, v3, s[12:15], 0 offen offset:16")
        e(f"buffer_load_dword v{GX+8}, v3, s[12:15], 0 offen offset:32")
        e(f"buffer_load_dwordx4 {vr(GX+12,4)}, v2, s[20:23], 0 offen")
        e(f"buffer_load_dwordx4 {vr(GX+16,4)}, v2, s[20:23], 0 offen offset:16")
        e(f"buffer_load_dword v{GX+20}, v2, s[20:23], 0 offen offset:32")
        e("v_lshlrev_b32 v1, 2, v1")
        e("v_cmp_eq_u32 vcc, 0, v4")
        e(f"v_mov_b32 v5, {OOB:#x}")
        e(f"v_mov_b32 v{GX+9}, 0")
        e(f"v_cndmask_b32 v{GX+22}, v5, v1, vcc")

    def wo_gather():
        e(f"v_and_b32 v1, 15, {L}")
        e(f"v_lshrrev_b32 v2, 4, {L}")
        e("v_lshrrev_b32 v3, 2, v1")
        e("v_and_b32 v4, 3, v1")
        e("v_lshl_add_u32 v3, v3, 3, v4")
        e("v_lshrrev_b32 v6, 1, v2")
        e("v_mul_u32_u24 v6, 20, v6")
        e("v_and_b32 v4, 1, v2")
        e("v_lshl_add_u32 v6, v4, 3, v6")
        e("v_mul_u32_u24 v7, 144, v2")
        e("s_lshr_b32 s58, s2, 5")
        e("s_mul_i32 s58, s58, 72")
        e("s_bfe_u32 s59, s2, 0x20002")
        e("s_mul_i32 s59, s59, 36")
        e("s_and_b32 s62, s2, 3")
        e("s_mul_i32 s63, s62, 144")
        e("s_add_u32 s63, s63, s59")
        e("s_add_u32 s59, s59, 16")
        e("s_mov_b64 s[64:65], 0")
        e("s_mov_b32 s66, 16")
        wo_job_addr(e, 24, "s50", "s63", "s[64:65]", "s66")
        e("s_cmp_eq_u32 s50, 1")
        e("s_cselect_b32 s67, s62, 4")
        e("s_cmp_eq_u32 s62, 0")
        e("s_cselect_b32 s66, 3, 2")
        e("s_cmp_lt_u32 s50, s66")
        e("s_cselect_b32 s66, 16, 0")
        e("s_cmp_ge_u32 s50, 1")
        e("s_cselect_b64 s[64:65], -1, 0")
        e("s_cselect_b32 s71, s59, s63")
        wo_job_addr(e, 25, "s67", "s71", "s[64:65]", "s66")
        e("s_bitcmp1_b32 s2, 4")
        e("s_cselect_b32 s20, s38, s32")
        e("s_cselect_b32 s21, s39, s33")
        e(f"s_mov_b32 s22, {576*1152}")
        e("s_mov_b32 s23, 0x00020000")
        e(f"s_mov_b32 s60, {4*1152}")
        for job in range(2):
            for j in range(8):
                so = "0" if j < 4 else "s60"
                e(f"buffer_load_ushort v{WG+8*job+j}, v{24+job}, s[20:23], {so} offen offset:{(j%4)*1152}{' nt' if opt.get('wont') else ''}")

    lag = opt.get("lag", 0)
    order = []

    def do(item):
        k, st = item[:2]
        if k == "x":
            issue_x(st)
            order.append((k, st, 4))
        elif k == "w":
            for j in item[2]:
                issue_w(st, [j])
                order.append((k, st, 1, j))
        elif k == "t":
            touch()
            order.append((k, st, 1))
        elif k == "g":
            counter_load()
            order.append((k, st, 1))

    head, tail = range(0, 8 - lag), range(8 - lag, 8)
    e("s_waitcnt lgkmcnt(0)")
    common_srds(e)
    for it in [("x", 0), ("w", 0, range(8)), ("x", 1), ("w", 1, head)]:
        do(it)

    def after(pred):
        idx = max(k for k, o in enumerate(order) if pred(o))
        return sum(o[2] for o in order[idx+1:])

    for s in range(9):
        if s == 8:
            e(f"s_waitcnt vmcnt({after(lambda o: o[0] == 'w' and o[1] == 8 and o[3] == 3)})")
            e("s_barrier")
        e(f"s_waitcnt vmcnt({after(lambda o: o[0] in 'xw' and o[1] == s)})")
        if opt.get("lstamp") == 2:
            e.stamp(2 + s)
        e("s_barrier")
        if opt.get("lstamp") == 1:
            e.stamp(2 + s)
        if s == 0:
            e.stamp(1)
        if s + 1 <= 8:
            do(("w", s + 1, tail))
        if s + 2 <= 8:
            do(("x", s + 2))
            do(("w", s + 2, head))
        if s == opt.get("gpos", 7):
            do(("g", 0))
        if s == opt.get("touch", 7):
            do(("t", 0))
    e(f"s_waitcnt vmcnt({1 if order[-1][0] == 't' else 0})")
    gate_loads()
    if opt.get("lstamp"):
        e.final = opt["stamp"]
        e.opt = dict(opt, stamp=0)
    e.stamp(2)
    e("s_cmp_eq_u32 s3, 4")
    e("s_cbranch_scc1 .Lwave4")
    wo_gather()
    sm = opt.get("sidemode", 1)
    if sm == 1:
        e("s_waitcnt vmcnt(0)")
        side_calc(e)
    attn_setup(e)
    e("s_barrier")
    e.stamp(3)
    e("s_branch .Lp2_join")
    e.label(".Lwave4")
    e("v_cmp_le_u32 vcc, 64, v58")
    e("s_and_b32 s68, vcc_lo, 15")
    e("s_cmp_eq_u32 s68, 15")
    e("s_cbranch_scc1 .Lcleared")
    poll(e, 58, 57, "s[24:27]", "0", "v_cmp_le_u32 vcc, 64, v58", 0xf)
    e.label(".Lcleared")
    e("s_lshl_b32 s71, s4, 7")
    e(f"s_add_u32 s71, s71, {F1L}")
    e(f"v_and_b32 v13, 31, {L}")
    e("v_lshlrev_b32 v13, 2, v13")
    e(f"buffer_load_dword v14, v13, {WS}, s71 offen sc1")
    e("s_mov_b32 s7, s71")
    wo_gather()
    attn_setup(e)
    e("s_lshl_b32 s61, s5, 2")
    e("v_mov_b32 v11, s61")
    e("v_mov_b32 v12, s6")
    e(f"s_mov_b32 s70, {SPIN}")
    e("s_barrier")
    e.stamp(3)
    e("s_mov_b64 exec, 1")
    e(f"buffer_store_dword v12, v11, {WS}, s7 offen")
    e("s_mov_b64 exec, -1")
    e.label(".Lsync1")
    e(f"buffer_load_dword v14, v13, {WS}, s7 offen sc1")
    e("s_waitcnt vmcnt(0)")
    e("v_cmp_eq_u32 vcc, s6, v14")
    e("s_cmp_eq_u32 vcc_lo, -1")
    e("s_cbranch_scc1 .Lsync1_far" if opt.get("forceslow") else "s_cbranch_scc1 .Lp2_join")
    e("s_sub_u32 s70, s70, 1")
    e("s_and_b32 s68, s70, 31")
    e("s_cbranch_scc1 .Lsync1")
    e("s_mov_b64 exec, 1")
    e(f"buffer_store_dword v12, v11, {WS}, s7 offen offset:1024 sc1")
    e("s_mov_b64 exec, -1")
    e(f"buffer_load_dword v14, v13, {WS}, s7 offen offset:1024 sc1")
    e("s_waitcnt vmcnt(0)")
    e("v_cmp_eq_u32 vcc, s6, v14")
    e("v_cmp_eq_u32 s[68:69], 0, v14")
    e("s_cmp_eq_u32 vcc_lo, -1")
    e("s_cbranch_scc1 .Lp2_join")
    e("s_or_b32 s68, s68, vcc_lo")
    e("s_cmp_eq_u32 s68, -1")
    e("s_cbranch_scc0 .Lsync1_far")
    e("s_cmp_gt_u32 s70, 32")
    e("s_cbranch_scc1 .Lsync1")
    e.label(".Lsync1_far")
    e("buffer_wbl2 sc1")
    e("s_waitcnt vmcnt(0)")
    e("s_add_u32 s7, s7, 2048")
    e("s_mov_b64 exec, 1")
    e(f"buffer_store_dword v12, v11, {WS}, s7 offen sc1")
    e("s_mov_b64 exec, -1")
    poll(e, 14, 13, WS, "s7", "v_cmp_ne_u32 vcc, 0, v14", 0xffffffff)
    e("buffer_inv sc1")
    e("s_waitcnt vmcnt(0)")
    e("s_branch .Lp2_join")


def side_calc(e):
    z, t = GX + 9, GX + 10
    for j in range(9):
        e(f"v_dot2c_f32_bf16 v{z}, v{GX+j}, v{GX+12+j}")
    e("s_nop 2")
    for ctl in ("quad_perm:[1,0,3,2]", "quad_perm:[2,3,0,1]", "row_half_mirror", "row_mirror"):
        e(f"v_add_f32_dpp v{z}, v{z}, v{z} {ctl} row_mask:0xf bank_mask:0xf")
        e("s_nop 1")
    e(f"v_mov_b32 v{t}, v{z}")
    e("s_nop 1")
    e(f"v_permlane16_swap_b32 v{z}, v{t}")
    e("s_nop 1")
    e(f"v_add_f32 v{z}, v{z}, v{t}")
    e(f"v_mul_f32 v{z}, {f32(-math.log2(math.e))}, v{z}")
    e(f"v_exp_f32 v{z}, v{z}")
    e("s_nop 0")
    e(f"v_add_f32 v{z}, 1.0, v{z}")
    e(f"v_rcp_f32 v{z}, v{z}")
    e("s_nop 0")
    e(f"v_sub_f32 v{t}, 1.0, v{z}")
    for job in range(2):
        for j in range(4):
            e(f"v_lshl_or_b32 v{WG+8*job+j}, v{WG+8*job+2*j+1}, 16, v{WG+8*job+2*j}")


def wo_store(e):
    L = f"v{LANE}"
    e("s_cmp_ge_u32 s3, 4")
    e("s_cbranch_scc0 .Lwo_done")
    z, t = GX + 9, GX + 10
    if e.opt.get("sidemode", 1) == 1:
        e("s_cmp_eq_u32 s3, 4")
        e("s_cbranch_scc0 .Lside_ready")
    side_calc(e)
    e.label(".Lside_ready")
    e(f"s_mov_b32 s60, {GATE}")
    e(f"s_mov_b32 s61, {GATE + 8192}")
    e(f"buffer_store_dword v{z}, v{GX+22}, {WS}, s60 offen sc1")
    e(f"buffer_store_dword v{t}, v{GX+22}, {WS}, s61 offen sc1")
    e("s_lshr_b32 s60, s2, 2")
    e(f"s_mul_i32 s60, s60, {WSET}")
    e(f"s_add_u32 s60, s60, {WOP}")
    e("s_mul_i32 s61, s62, 5120")
    e("s_add_u32 s61, s61, s60")
    e("s_sub_u32 s63, s3, 4")
    e("s_lshl_b32 s63, s63, 10")
    e("s_add_u32 s63, s63, s61")
    e(f"buffer_store_dwordx4 {vr(WG,4)}, v{AK1}, {WS}, s63 offen sc1")
    e("s_cmp_eq_u32 s66, 0")
    e("s_cbranch_scc1 .Lwo_done")
    e("s_cmp_eq_u32 s3, 4")
    e("s_cbranch_scc0 .Lwo_extra")
    e("s_add_u32 s61, s61, 4096")
    e(f"buffer_store_dwordx4 {vr(WG+8,4)}, v{AK1}, {WS}, s61 offen sc1")
    e("s_branch .Lwo_done")
    e.label(".Lwo_extra")
    e("s_lshl_b32 s61, s67, 9")
    e("s_add_u32 s61, s61, s60")
    e("s_add_u32 s61, s61, 20480")
    e(f"v_lshlrev_b32 v{WG+4}, 3, {L}")
    e(f"buffer_store_dwordx2 {vr(WG+8,2)}, v{WG+4}, {WS}, s61 offen sc1")
    e.label(".Lwo_done")


def fo_word(e, d, t):
    e(f"s_and_b32 {d}, s4, 4")
    e(f"s_lshr_b32 {t}, s5, 3")
    e(f"s_add_u32 {d}, {d}, {t}")
    e(f"s_lshl_b32 {d}, {d}, 7")
    e(f"s_and_b32 {t}, s4, 3")
    e(f"s_lshl_b32 {t}, {t}, 3")
    e(f"s_add_u32 {d}, {d}, {t}")
    e(f"s_and_b32 {t}, s5, 4")
    e(f"s_add_u32 {d}, {d}, {t}")


def common_srds(e):
    if e.opt.get("wsoff"):
        e(f"s_add_u32 s8, s46, {e.opt['wsoff'] << 20}")
        e("s_addc_u32 s9, s47, 0")
        e(f"s_mov_b32 s10, {WS_BYTES - (e.opt['wsoff'] << 20)}")
        e("s_mov_b32 s11, 0x00020000")
    else:
        srd(e, 8, 46, WS_BYTES)
    srd(e, 12, 28, 0 if e.opt.get("g_nox") else 2048 * 1152)
    e("s_cmp_lt_u32 s4, 4")
    e("s_cselect_b32 s16, s30, s36")
    e("s_cselect_b32 s17, s31, s37")
    e(f"s_mov_b32 s18, {0 if e.opt.get('g_now') else 576*3456}")
    e("s_mov_b32 s19, 0x00020000")


def gen_consumer(e):
    opt = e.opt
    L = f"v{LANE}"
    e("s_and_b32 s50, s3, 1")
    e("s_lshr_b32 s51, s3, 1")
    w_prefetch_addr(e, 213)
    e(f"s_mov_b32 s71, {64*3456}")
    e("s_waitcnt lgkmcnt(0)")
    common_srds(e)

    xpf = opt.get("xpf", 0)
    if xpf:
        e("s_lshl_b32 s52, s5, 6")
        e("s_lshl_b32 s53, s3, 5")
        e("s_add_u32 s52, s52, s53")
        e(f"v_add_u32 v3, s52, {L}")
        e("v_mul_u32_u24 v3, 1152, v3")
        e(f"v_cmp_gt_u32 vcc, 32, {L}")
        e("s_cmp_lt_u32 s3, 2")
        e("s_cselect_b32 s20, s12, s16")
        e("v_cndmask_b32 v3, v5, v3, vcc")
        e("s_cselect_b32 s21, s13, s17")
        e("s_cselect_b32 s22, s14, s18")
        e("s_mov_b32 s23, 0x00020000")
        e(f"s_cselect_b32 s71, 128, s71")
        e("s_cselect_b64 vcc, -1, 0")
        e("v_cndmask_b32 v213, v213, v3, vcc")

    def prefetch(stage):
        if opt.get("nopf"):
            return
        if xpf:
            e(f"s_mul_i32 s53, s71, {stage}")
            e("buffer_load_dword v214, v213, s[20:23], s53 offen")
        else:
            e(f"s_mov_b32 s53, {stage*64*3456}")
            e("buffer_load_dword v214, v213, s[16:19], s53 offen")

    pfd = opt.get("pfd", 3)
    for st in range(opt.get("pf0", 0), pfd):
        prefetch(st)
    e("s_cmp_eq_u32 s3, 3")
    e("s_cbranch_scc0 .Lnoarrive")
    e("s_lshl_b32 s52, s4, 7")
    e("s_lshl_b32 s53, s5, 2")
    e("s_add_u32 s52, s52, s53")
    e(f"v_lshlrev_b32 v1, 10, {L}")
    e("v_add_u32 v1, s52, v1")
    e("s_lshl_b32 s52, s2, 2")
    e("s_add_u32 s52, s52, 3072")
    e("v_mov_b32 v3, s52")
    e("s_and_b32 s52, s5, 3")
    e("s_lshl_b32 s52, s52, 13")
    fo_word(e, "s53", "s54")
    e("s_add_u32 s52, s52, s53")
    e(f"v_lshlrev_b32 v2, 10, {L}")
    e("v_add_u32 v2, s52, v2")
    e(f"v_cmp_gt_u32 vcc, 3, {L}")
    e(f"v_mov_b32 v7, {OOB:#x}")
    e("v_mov_b32 v141, 0")
    e("v_cndmask_b32 v1, v2, v1, vcc")
    e(f"v_cmp_eq_u32 vcc, 3, {L}")
    e("s_nop 1")
    e("v_cndmask_b32 v1, v1, v3, vcc")
    e(f"v_cmp_gt_u32 vcc, 12, {L}")
    e("s_nop 1")
    e("v_cndmask_b32 v140, v7, v1, vcc")
    srd(e, 24, 44, 256)
    e(f"s_mov_b32 s52, {FLG}")
    e(f"buffer_store_dword v141, v140, {WS}, s52 offen sc1")
    e("s_and_b32 s52, s2, 3")
    e("s_lshl_b32 s52, s52, 6")
    e("v_mov_b32 v1, 1")
    e("s_waitcnt vmcnt(0)")
    e("s_mov_b64 exec, 1")
    e("buffer_atomic_add v1, v141, s[24:27], s52 offen")
    e("s_mov_b64 exec, -1")
    e.label(".Lnoarrive")
    e(f"v_and_b32 v1, 15, {L}")
    e(f"v_lshrrev_b32 v2, 4, {L}")
    e(f"v_bfe_u32 v3, {L}, 1, 3")
    e("v_xor_b32 v3, v2, v3")
    e("s_lshl_b32 s52, s51, 6")
    e("v_add_u32 v4, s52, v1")
    e("v_lshlrev_b32 v4, 7, v4")
    e("v_lshl_add_u32 v4, v3, 4, v4")
    e(f"v_add_u32 v207, {XB}, v4")
    e("v_xor_b32 v222, 64, v207")
    e("s_and_b32 s52, s4, 1")
    e("s_lshl_b32 s52, s52, 2")
    e("s_mul_i32 s53, s50, 27")
    e("s_add_u32 s52, s52, s53")
    e("s_mul_i32 s53, s50, 3")
    for p in range(3):
        e(f"s_add_u32 s59, s53, {p}")
        e("s_cmp_ge_u32 s59, 4")
        e("s_cselect_b32 s60, 4, 0")
        e("s_cmp_ge_u32 s59, 2")
        e("s_cselect_b32 s61, 6, 2")
        e("s_cmp_eq_u32 s49, 0")
        e("s_cselect_b32 s60, s60, s61")
        e(f"s_add_u32 s{62+p}, s52, {9*p}")
        e(f"s_add_u32 s{62+p}, s{62+p}, s60")
    e("v_lshrrev_b32 v3, 2, v1")
    e("v_lshl_add_u32 v4, v2, 3, v3")
    e("v_lshlrev_b32 v4, 9, v4")
    e(f"v_bfe_u32 v5, {L}, 3, 2")
    e("v_lshlrev_b32 v5, 3, v5")
    e("v_and_b32 v6, 4, v1")
    e("v_and_b32 v7, 3, v1")
    e("v_lshrrev_b32 v8, 1, v7")
    e("v_lshl_add_u32 v8, v7, 1, v8")
    e("v_add_u32 v8, v8, v5")
    for tile in range(7):
        if tile < 6:
            e(f"v_add_u32 v9, s{62 + tile//2}, v8")
            if tile % 2:
                e("v_add_u32 v9, 1, v9")
        else:
            e("v_mov_b32 v9, s64")
            e("v_mov_b32 v3, s63")
            e("v_cmp_eq_u32 vcc, 1, v7")
            e("s_nop 1")
            e("v_cndmask_b32 v9, v9, v3, vcc")
            e("v_mov_b32 v3, s62")
            e("v_cmp_eq_u32 vcc, 0, v7")
            e("s_nop 1")
            e("v_cndmask_b32 v9, v9, v3, vcc")
            e("v_add3_u32 v9, v9, v5, 4")
        e("v_and_b32 v9, 63, v9")
        e("v_xor_b32 v9, v9, v6")
        e(f"v_lshl_add_u32 v{200+tile}, v9, 3, v4")
        if tile == 6 and not opt.get("x_dup"):
            e("v_cmp_eq_u32 vcc, 3, v7")
            e("v_mov_b32 v3, 0x40000")
            e("s_nop 0")
            e(f"v_cndmask_b32 v{200+tile}, v{200+tile}, v3, vcc")
        e(f"v_add_u32 v{215+tile}, {2*WSLOT}, v{200+tile}")
    e("v_lshrrev_b32 v3, 1, v2")
    e(f"s_mov_b32 s52, {HS}")
    e("v_mul_lo_u32 v3, v3, s52")
    e("v_and_b32 v4, 1, v2")
    e("v_lshl_add_u32 v5, v4, 9, v3")
    e("v_lshl_add_u32 v208, v1, 4, v5")
    e("v_lshl_add_u32 v5, v4, 4, v3")
    e("v_lshl_add_u32 v209, v1, 5, v5")
    e("s_mul_i32 s52, s49, 12")
    e("s_mul_i32 s53, s50, 6")
    e("s_add_u32 s54, s52, s53")
    e("s_lshl_b32 s55, s48, 1")
    e("s_add_u32 s55, s55, s51")
    e("s_lshl_b32 s56, s4, 3")
    e("v_lshl_add_u32 v3, v2, 1, s54")
    e("v_lshrrev_b32 v4, 3, v3")
    e("v_and_b32 v3, 7, v3")
    e("v_add_u32 v3, s56, v3")
    e(f"s_mov_b32 s52, {HS}")
    e("v_mul_lo_u32 v3, v3, s52")
    e(f"s_mul_i32 s57, s55, {QCH}")
    e(f"s_add_u32 s57, s57, {QOFF}")
    e(f"s_mul_i32 s58, s55, {CH}")
    e("v_lshrrev_b32 v5, 3, v1")
    e("v_mul_u32_u24 v5, 512, v5")
    e("v_add_u32 v5, s58, v5")
    e("v_mov_b32 v6, s57")
    e("v_cmp_eq_u32 vcc, 0, v4")
    e(f"v_mov_b32 v7, {f32(QSCALE)}")
    e("s_nop 0")
    e("v_cndmask_b32 v5, v5, v6, vcc")
    e("v_cndmask_b32 v212, 1.0, v7, vcc")
    e("v_add_u32 v5, v5, v3")
    e("v_lshl_add_u32 v5, v1, 4, v5")
    e("v_add_u32 v210, 2048, v5")
    e("v_lshlrev_b32 v6, 5, v1")
    e("v_add3_u32 v6, v6, v3, s58")
    e(f"v_add_u32 v211, {VX}, v6")
    e(f"v_mov_b32 v7, {OOB:#x}")
    e("v_cmp_eq_u32 vcc, 2, v4")
    e("s_nop 1")
    e("v_cndmask_b32 v210, v210, v7, vcc")
    e("v_cndmask_b32 v211, v7, v211, vcc")
    e("v_cmp_eq_u32 vcc, 3, v2")
    e("s_nop 1")
    e("v_cndmask_b32 v210, v210, v7, vcc")
    e("v_cndmask_b32 v211, v211, v7, vcc")

    F = [112, 156]

    def reads(stage, ks, fb):
        slot = stage % 3
        xr = [f"ds_read_b128 {vr(fb+4*tt,4)}, v{222 if ks else 207} offset:{slot*XSLOT + tt*2048}" for tt in range(4)]
        wr_ = []
        for tile in range(7):
            for r in range(2):
                a = (215 if slot == 2 else 200) + tile
                off = (WSLOT if slot == 1 else 0) + ks * 16384 + r * 2048
                wr_.append(f"ds_read_b64_tr_b16 {vr(fb+16+4*tile+2*r,2)}, v{a} offset:{off}")
        return xr[0:2] + wr_[0:2] + xr[2:4] + wr_[2:]

    def mfmas(fb, first):
        out = []
        for tile in range(7):
            for tt in range(4):
                acc = vr((tt * 7 + tile) * 4, 4)
                c = "0" if first else acc
                out.append(f"v_mfma_f32_16x16x32_bf16 {acc}, {vr(fb+16+4*tile,4)}, {vr(fb+4*tt,4)}, {c}")
        return out

    e("s_barrier")
    e.stamp(1)
    for r in reads(0, 0, F[0]):
        e(r)
    e("s_waitcnt lgkmcnt(0)")
    def mix(m, rd):
        for i, x in enumerate(m):
            e(x)
            if i < len(rd):
                e(rd[i])

    if pfd <= 8:
        prefetch(pfd)
    for ph in range(15):
        s, ks = divmod(ph, 2)
        mix(mfmas(F[ks], ph == 0), reads(s, 1, F[1]) if ks == 0 else reads(s + 1, 0, F[0]))
        e("s_waitcnt lgkmcnt(0)")
        if ks == 0 and s < 7:
            e("s_barrier")
            if s + 1 + pfd <= 8:
                prefetch(s + 1 + pfd)
    m = mfmas(F[1], False)
    mix(m[:14], [])
    e("s_barrier")
    mix(m[14:], reads(8, 0, F[0])[:14])
    for r in reads(8, 0, F[0])[14:]:
        e(r)
    e("s_waitcnt lgkmcnt(0)")
    m = mfmas(F[0], False)
    mix(m[:10], [])
    e("s_barrier")
    mix(m[10:], reads(8, 1, F[1]))
    e("s_waitcnt lgkmcnt(0)")
    last = mfmas(F[1], False)
    mix(last[:8], [])
    e.stamp(2)
    for p in range(3):
        e(f"s_add_u32 s52, s54, {2*p}")
        e("s_lshr_b32 s53, s52, 3")
        e("s_and_b32 s52, s52, 7")
        e("s_add_u32 s52, s52, s56")
        e(f"s_mul_i32 s52, s52, {HS}")
        e("s_cmp_eq_u32 s53, 0")
        e("s_cselect_b32 s59, s57, s58")
        e("s_add_u32 s60, s52, s59")
        e("s_cmp_eq_u32 s53, 2")
        e(f"s_cbranch_scc1 .Lqkv_ep_v{p}")
        e("s_cmp_eq_u32 s53, 0")
        e(f"s_cbranch_scc0 .Lqkv_ep_k{p}")
        e(f"s_mov_b32 s59, {f32(QSCALE)}")
        for kind in "qkv":
            if kind != "q":
                e.label(f".Lqkv_ep_{kind}{p}")
            if kind == "v":
                e(f"s_add_u32 s60, s60, {VM}")
            todo = list(last[8 + 8*p: 16 + 8*p])
            for tt in range(4):
                r = (tt * 7 + 2 * p) * 4
                d = 112 + (p % 2) * 16 + tt * 4 if p < 2 else 144 + (tt % 2) * 4 + (tt // 2) * 80
                ops = []
                if kind == "q":
                    ops += [f"v_mul_f32 v{r+j}, s59, v{r+j}" for j in range(8)]
                ops += [f"v_cvt_pk_bf16_f32 v{d+j}, v{r+2*j}, v{r+2*j+1}" for j in range(4)]
                for k, x in enumerate(ops):
                    if k % 2 == 0 and todo:
                        e(todo.pop(0))
                    e(x)
                if kind == "v":
                    e(f"buffer_store_dwordx4 {vr(d,4)}, v209, {WS}, s60 offen offset:{tt*512}")
                else:
                    e(f"buffer_store_dwordx4 {vr(d,4)}, v208, {WS}, s60 offen offset:{(tt//2)*1024 + (tt%2)*256}")
            assert not todo
            if kind != "v":
                e(f"s_branch .Lqkv_ep_n{p}")
        e.label(f".Lqkv_ep_n{p}")
    X = 160
    for tt in range(4):
        r = (tt * 7 + 6) * 4
        for j in range(4):
            e(f"v_mul_f32 v{r+j}, v212, v{r+j}")
        e(f"v_cvt_pk_bf16_f32 v{X+tt}, v{r}, v{r+1}")
        e(f"v_cvt_pk_bf16_f32 v{X+4+tt}, v{r+2}, v{r+3}")
    e(f"s_mov_b32 s59, {HS}")
    e("s_cmp_ge_u32 s54, 16")
    e("s_cbranch_scc1 .Lqkv_ex_v")
    e(f"buffer_store_dwordx4 {vr(X,4)}, v210, {WS}, 0 offen")
    e(f"buffer_store_dwordx4 {vr(X+4,4)}, v210, {WS}, s59 offen")
    e("s_cmp_ge_u32 s54, 12")
    e("s_cbranch_scc0 .Lp1_join")
    e.label(".Lqkv_ex_v")
    for k in range(8):
        e(f"v_mov_b32 v{X+8+2*k}, v{X+k}")
        e(f"v_mov_b32 v{X+9+2*k}, 0x3f80")
    for k in range(4):
        e(f"buffer_store_dwordx4 {vr(X+8+4*k,4)}, v211, {WS}, {'0' if k < 2 else 's59'} offen offset:{(k%2)*16}")
    e.label(".Lp1_join")
    e("s_waitcnt vmcnt(0)")
    e("s_barrier")
    e.stamp(3)
    e.label(".Lp1_done")


X_, Y_ = 0, 32
OA, OB = 64, 80
Q1A, Q1B, Q2A, Q2B = 96, 100, 104, 106
K1LO, K1HI, K2R = 108, 112, 116
IDX, AK1, AK2, AK20 = 118, 119, 120, 121
AV, AVI = 140, 144
VF = 124
WOM, WOE, GT = 152, 232, 242


def rdV(j, off):
    return [f"ds_read_b64_tr_b16 {vr(VF+4*j+2*r,2)}, v{AV+j} offset:{off + r*128}" for r in range(2)]


def pv(o, j, src):
    return f"v_smfmac_f32_32x32x32_bf16 {vr(o,16)}, {vr(VF+4*j,4)}, {vr(src+8*j,8)}, v{IDX}"


def dma_round(e, step=8192, off=0):
    if step:
        e(f"s_add_u32 m0, m0, {step}")
        e(f"s_add_u32 s53, s53, {step}")
    e(f"buffer_load_dwordx4 v{AK1}, {WS}, s53 offen offset:{off} sc1 lds")


def attn_unit(e, which, ci, first=False, side=()):
    if which == "A":
        cur, oth, o, op, q1, q2 = X_, Y_, OA, OB, Q1B, Q2B
    else:
        cur, oth, o, op, q1, q2 = Y_, X_, OB, OA, Q1A, Q2A
    c0, c1 = ci * CH, (ci + 1) * CH
    A = which == "A"
    wfirst = e.opt.get("wfirst", 1)

    def ex(a, b):
        for i in range(a, b + 1):
            e(f"v_exp_f32 v{cur+i}, v{cur+i}")

    def slot(rd, wait=None):
        if e.opt.get("x_halfv") and rd and "tr_b16" in rd and "offset:%d" % (c0 + 128) + "$" in rd + "$":
            rd = None
        if e.opt.get("x_halfv") and rd and "tr_b16" in rd and "offset:%d" % (c1 + 128) + "$" in rd + "$":
            rd = None
        if e.opt.get("x_nolds"):
            rd = None
        if wait is not None and wfirst:
            e(f"s_waitcnt lgkmcnt({wait})")
        if rd:
            e(rd)
        if wait is not None and not wfirst:
            e(f"s_waitcnt lgkmcnt({wait + 1})")

    side = list(side)

    def job():
        if side:
            side.pop(0)()

    ex(0, 1)
    if not first:
        e(pv(op, 3, oth))
    if A:
        slot(rdV(2, c0)[1], 1)
    else:
        job()
        job()
    ex(2, 4)
    xv = e.opt.get("xv", 0)
    if xv == 1:
        e(f"v_mfma_f32_32x32x8_bf16 {vr(oth,16)}, {vr(K2R,2)}, {vr(q2,2)}, 0")
        ex(5, 7)
        e(f"v_mfma_f32_32x32x8_bf16 {vr(oth+16,16)}, {vr(K2R,2)}, {vr(q2,2)}, 0")
    elif xv == 2:
        e(f"v_mfma_f32_16x16x4_4b_bf16 {vr(oth,16)}, {vr(K2R,2)}, {vr(q2,2)}, 0")
        ex(5, 7)
        e(f"v_mfma_f32_16x16x4_4b_bf16 {vr(oth+16,16)}, {vr(K2R,2)}, {vr(q2,2)}, 0")
    else:
        e(f"v_mfma_f32_32x32x4_2b_bf16 {vr(oth,32)}, {vr(K2R,2)}, {vr(q2,2)}, 0")
    pr = e.opt.get("prio", 8)
    if pr:
        u = (2 * ci + (0 if A else 1)) % (2 * pr)
        for at, lvl in ((0, 2), (2 * pr - e.opt.get("priol", 2), 0)):
            if u == at:
                lab = e.uid("pr")
                e("s_cmp_lt_u32 s3, 4")
                e(f"s_cbranch_scc0 {lab}")
                e(f"s_setprio {lvl}")
                e.label(lab)
    jp = e.opt.get("jobpos", 0)
    if jp == 0:
        job()
    ex(8 if xv in (1, 2) else 5, 12)
    e(pv(o, 0, cur))
    if jp == 2:
        job()
    slot(f"ds_read_b32 v{K2R}, v{AK2} offset:{c1}" if A else rdV(0, c1)[0])
    if jp == 1:
        job()
    ex(13, 17)
    e(pv(o, 1, cur))
    slot(rdV(3, c0)[0] if A else rdV(0, c1)[1], 1)
    ex(18, 20)
    e(f"v_mfma_f32_32x32x16_bf16 {vr(oth,16)}, {vr(K1LO,4)}, {vr(q1,4)}, {vr(oth,16)}")
    slot(rdV(3, c0)[1] if A else rdV(1, c1)[0])
    ex(21, 23)
    e(f"v_mfma_f32_32x32x16_bf16 {vr(oth+16,16)}, {vr(K1HI,4)}, {vr(q1,4)}, {vr(oth+16,16)}")
    slot(f"ds_read_b128 {vr(K1LO,4)}, v{AK1} offset:{c1}" if A else rdV(1, c1)[1])
    ex(24, 26)
    e(pv(o, 2, cur))
    if A:
        slot(f"ds_read_b128 {vr(K1HI,4)}, v{AK1} offset:{c1 + 1024}", 1)
    else:
        slot(rdV(2, c1)[0])
    ex(27, 29)
    for _ in range(e.opt.get("x_vnop", 0)):
        e("v_nop")
    for k in range(e.opt.get("x_vexp", 0)):
        e(f"v_exp_f32 v{T1}, v{cur+k}")
    ex(30, 31)
    assert not side


def max_tree(e, dst, src, n, init):
    i = 0
    if not init:
        e(f"v_max3_f32 v{dst}, v{src}, v{src+1}, v{src+2}")
        i = 3
    while i + 1 < n:
        e(f"v_max3_f32 v{dst}, v{src+i}, v{src+i+1}, v{dst}")
        i += 2
    if i < n:
        e(f"v_max_f32 v{dst}, v{src+i}, v{dst}")


def set_m(e, pairs, exact=True):
    for m, t, q in pairs:
        e(f"v_mov_b32 v{t}, v{m}")
    e("s_nop 1")
    for m, t, q in pairs:
        e(f"v_permlane32_swap_b32 v{m}, v{t}")
    e("s_nop 1")
    for m, t, q in pairs:
        e(f"v_max_f32 v{m}, v{m}, v{t}")
    if not exact:
        for m, t, q in pairs:
            e(f"v_cvt_pk_bf16_f32 v{q}, -v{m}, 0")
        return
    for m, t, q in pairs:
        e(f"v_cvt_pk_bf16_f32 v{t}, v{m}, v{m}")
    for m, t, q in pairs:
        e(f"v_lshlrev_b32 v{t}, 16, v{t}")
    for m, t, q in pairs:
        e(f"v_sub_f32 v{m}, v{m}, v{t}")
    for m, t, q in pairs:
        e(f"v_cvt_pk_bf16_f32 v{q}, -v{t}, -v{m}")


def attn_addr_init(e):
    e(f"v_lshlrev_b32 v{AK1}, 4, v{LANE}")
    e(f"v_mov_b32 v{AK2}, v{AK20}")
    for j in range(4):
        e(f"v_mov_b32 v{AV+j}, v{AVI+j}")


def attn_setup(e):
    L = f"v{LANE}"
    e("s_lshl_b32 s48, s4, 3")
    e("s_lshr_b32 s49, s5, 2")
    e("s_add_u32 s48, s48, s49")
    e("s_and_b32 s49, s5, 3")
    e("s_lshl_b32 s49, s49, 3")
    e("s_add_u32 s49, s49, s3")
    e(f"s_mul_i32 s50, s48, {HS}")
    e(f"s_mul_i32 s51, s49, {QCH}")
    e("s_add_u32 s51, s51, s50")
    e(f"s_add_u32 s51, s51, {QOFF}")
    e("s_lshl_b32 s52, s3, 10")
    e("s_add_u32 s53, s50, s52")
    e("s_mov_b32 m0, s52")
    e(f"v_and_b32 v2, 15, {L}")
    e(f"v_lshrrev_b32 v3, 4, {L}")
    e("v_lshrrev_b32 v4, 1, v3")
    e("v_lshlrev_b32 v4, 8, v4")
    e("v_lshrrev_b32 v5, 2, v2")
    e("v_lshl_add_u32 v4, v5, 5, v4")
    e("v_and_b32 v6, 1, v2")
    e("v_bfe_u32 v7, v2, 1, 1")
    e("v_lshl_add_u32 v6, v6, 1, v7")
    e("v_lshlrev_b32 v6, 3, v6")
    e(f"v_add_u32 v6, {VM}, v6")
    e("v_and_b32 v9, 3, v2")
    e("v_cmp_eq_u32 vcc, 0, v9")
    e("v_mov_b32 v9, 0x40000")
    e(f"v_mov_b32 v7, {VX}")
    e("v_and_b32 v8, 1, v3")
    e("v_cndmask_b32 v7, v9, v7, vcc")
    e("v_cmp_eq_u32 vcc, 0, v8")
    e("v_mov_b32 v9, 512")
    e("v_and_b32 v1, 7, v2")
    e("v_cndmask_b32 v6, v7, v6, vcc")
    e("v_cndmask_b32 v9, 8, v9, vcc")
    e(f"v_add_u32 v{AVI}, v4, v6")
    for j in range(1, 4):
        e(f"v_add_u32 v{AVI+j}, v{AVI+j-1}, v9")
    e("v_lshlrev_b32 v1, 4, v1")
    e("v_lshl_add_u32 v1, v3, 2, v1")
    e("v_lshrrev_b32 v5, 3, v2")
    e("v_mul_u32_u24 v5, 640, v5")
    e("v_add_u32 v1, 2048, v1")
    e(f"v_add_u32 v{AK20}, v1, v5")
    e("v_lshlrev_b32 v1, 2, v8")
    e(f"v_lshl_add_u32 v{T0}, v2, 4, v1")
    attn_addr_init(e)
    e(f"v_mov_b32 v{IDX}, 0xdddddddd")
    e(f"v_mov_b32 v{K2R+1}, 0x3f803f80")
    for i in range(32):
        e(f"v_mov_b32 v{OA+i}, 0")
    e("s_mov_b32 s55, 0")
    e("s_setprio 1")


def gen_attn(e):
    opt = e.opt
    L = f"v{LANE}"
    e("s_barrier")
    e.stamp(4)
    if opt.get("probe"):
        e(f"buffer_load_dwordx4 {vr(Q1A,4)}, v{AK1}, {WS}, s51 offen sc1")
        e("s_waitcnt vmcnt(0)")
        e.stamp(6)
        e(f"buffer_load_dword v{Q2A}, v{T0}, {WS}, s51 offen offset:2048 sc1")
        e("s_waitcnt vmcnt(0)")
        e.stamp(7)
        e(f"buffer_load_dwordx4 v{AK1}, {WS}, s53 offen sc1 lds")
        e("s_waitcnt vmcnt(0)")
        e.stamp(8)
        e(f"buffer_load_dwordx4 {vr(Q1B,4)}, v{AK1}, {WS}, s51 offen offset:1024 sc1")
        e("s_waitcnt vmcnt(0)")
        e.stamp(9)
        e.opt = dict(opt, stamp=0)
        e.final = opt["stamp"]
    e(f"buffer_load_dwordx4 {vr(Q1A,4)}, v{AK1}, {WS}, s51 offen sc1")
    e(f"buffer_load_dwordx4 v{AK1}, {WS}, s53 offen sc1 lds")
    e(f"buffer_load_dwordx4 {vr(Q1B,4)}, v{AK1}, {WS}, s51 offen offset:1024 sc1")
    dma_round(e)
    e(f"buffer_load_dword v{Q2A}, v{T0}, {WS}, s51 offen offset:2048 sc1")
    e(f"buffer_load_dword v{Q2B}, v{T0}, {WS}, s51 offen offset:2056 sc1")
    e("s_waitcnt vmcnt(0)")
    e("s_barrier")
    e.stamp(5)
    e(f"ds_read_b128 {vr(K1LO,4)}, v{AK1}")
    e(f"ds_read_b128 {vr(K1HI,4)}, v{AK1} offset:1024")
    e(f"ds_read_b32 v{K2R}, v{AK2}")
    for j in range(3):
        for r in rdV(j, 0):
            e(r)
    e("s_waitcnt lgkmcnt(8)")
    e(f"v_mfma_f32_32x32x16_bf16 {vr(X_,16)}, {vr(K1LO,4)}, {vr(Q1A,4)}, 0")
    e(f"v_mfma_f32_32x32x16_bf16 {vr(Y_,16)}, {vr(K1LO,4)}, {vr(Q1B,4)}, 0")
    e("s_waitcnt lgkmcnt(7)")
    e(f"v_mfma_f32_32x32x16_bf16 {vr(X_+16,16)}, {vr(K1HI,4)}, {vr(Q1A,4)}, 0")
    dma_round(e)
    e("s_mul_i32 s59, s3, 3072")
    e("s_add_u32 s59, s59, 8192")
    e("s_add_u32 m0, m0, s59")
    e("s_add_u32 s53, s53, s59")
    for k in range(2):
        dma_round(e, 0, 1024 * k)
    e("s_nop 0")
    if opt.get("x_nom"):
        e(f"v_mov_b32 v{Q2A+1}, 0")
        e(f"v_mov_b32 v{Q2B+1}, 0")
    else:
        nm = opt.get("mregs", 16)
        max_tree(e, Y_ + 16, X_, nm, False)
        max_tree(e, Y_ + 17, Y_, nm, False)
        set_m(e, [(Y_ + 16, Y_ + 18, Q2A + 1), (Y_ + 17, Y_ + 19, Q2B + 1)], exact=False)
    e("s_waitcnt lgkmcnt(0)")
    e("s_nop 0")
    e(f"v_mfma_f32_32x32x4_2b_bf16 {vr(X_,32)}, {vr(K2R,2)}, {vr(Q2A,2)}, {vr(X_,32)}")
    e("s_lshr_b32 s56, s5, 2")
    e("s_lshl_b32 s56, s56, 3")
    e("s_add_u32 s56, s56, s3")
    e("s_lshl_b32 s57, s56, 4")
    e("s_and_b32 s59, s5, 3")
    e("s_lshl_b32 s59, s59, 8")
    e("s_lshl_b32 s60, s4, 2")
    e("s_add_u32 s59, s59, s60")
    e("s_sub_u32 s59, s59, 128")
    e(f"v_lshl_add_u32 v246, {L}, 2, s57")
    e(f"v_lshl_add_u32 v247, {L}, 5, s59")
    e(f"v_cmp_gt_u32 vcc, 4, {L}")
    e(f"s_mov_b32 s57, {FW}")
    e(f"v_and_b32 v247, 0x3ff, v247")
    e("v_cndmask_b32 v246, v247, v246, vcc")
    e(f"s_mul_i32 s56, s56, {WSET}")
    e(f"s_add_u32 s24, s56, {WOP}")
    e("s_and_b32 s58, s3, 3" if opt.get("rrole", 2) else "s_lshr_b32 s58, s3, 1")
    e("s_lshl_b32 s58, s58, 6")
    e("s_lshl_b32 s59, s4, 10")
    e("s_add_u32 s58, s58, s59")
    e("s_and_b32 s59, s5, 3")
    e("s_lshl_b32 s59, s59, 8")
    e("s_add_u32 s58, s58, s59")
    e(f"s_add_u32 s25, s58, {GATE}")
    e(f"v_lshlrev_b32 v{T0}, 2, {L}")
    e(f"v_lshlrev_b32 v148, 4, {L}")
    e(f"v_lshlrev_b32 v149, 3, {L}")
    e(f"v_and_b32 v150, 60, v{T0}")
    e("v_add_u32 v151, 4096, v148")
    e(f"v_and_b32 v{T1}, 8, {L}")
    e(f"v_lshlrev_b32 v{T1}, 28, v{T1}")
    e(f"v_or_b32 v151, v151, v{T1}")
    wo_store(e)
    jobs = [(lambda k=k: dma_round(e, 32768 if k % 4 == 0 else 0, 1024 * (k % 4))) for k in range(2, 16)]
    if opt.get("x_nodma"):
        jobs = []
    for ci in range(8):
        if ci == 2:
            if not opt.get("x_nob1"):
                e("s_waitcnt vmcnt(6)")
                e("s_barrier")
            e("s_cmp_eq_u32 s3, 4")
            e("s_cbranch_scc0 .Lnofw")
            e("s_lshl_b32 s59, s2, 2")
            e(f"s_add_u32 s59, s59, {FW}")
            e("s_mov_b64 exec, 1")
            e(f"buffer_store_dword v{IDX}, v{T0}, {WS}, s59 offen sc1")
            e("s_mov_b64 exec, -1")
            e.label(".Lnofw")
        if ci == 7:
            if not opt.get("x_nob2"):
                e("s_waitcnt vmcnt(0)")
                e("s_barrier")
            e(f"buffer_load_dword v{T1}, v246, {WS}, s57 offen sc1")
        for w in "AB":
            n = 1 if w == "A" else 3
            side, jobs = jobs[:n], jobs[n:]
            attn_unit(e, w, ci, first=(ci == 0 and w == "A"), side=side)
    for a in (AK1, AK2, AV, AV + 1, AV + 2, AV + 3):
        e(f"v_add_u32 v{a}, {8*CH}, v{a}")
    e.stamp(6)
    e("s_lshl_b32 s21, s49, 10")
    fo_word(e, "s22", "s23")
    e("s_add_u32 s21, s21, s22")
    e(f"s_add_u32 s21, s21, {FO}")
    e("s_lshl_b32 s50, s4, 2")
    e("s_and_b32 s51, s5, 3")
    e("s_add_u32 s50, s50, s51")
    e("s_lshr_b32 s51, s5, 2")
    e("s_lshl_b32 s20, s50, 10")
    e("s_lshl_b32 s22, s3, 7")
    e("s_add_u32 s20, s20, s22")
    e(f"s_add_u32 s20, s20, {FO}")
    e(f"v_and_b32 v250, 7, {L}")
    e("v_lshlrev_b32 v250, 2, v250")
    if opt.get("wb"):
        e("s_cmp_eq_u32 s3, 7")
        e("s_cbranch_scc0 .Lnowb")
        if opt["wb"] == 2:
            e("s_cmp_eq_u32 s5, 0")
            e("s_cbranch_scc0 .Lnowb")
        e("buffer_wbl2 sc1")
        e.label(".Lnowb")
    jobs = []

    def wo_load(k):
        if k < 20:
            r, tile = divmod(k, 5)
            if tile == 0:
                e(f"s_add_u32 s59, s4, {r + 1}")
                e("s_and_b32 s59, s59, 3")
                e("s_mul_i32 s59, s59, 5120")
                e("s_add_u32 s26, s59, s24")
            a_, off = (148, tile * 1024) if tile < 4 else (151, 0)
            e(f"buffer_load_dwordx4 {vr(WOM+4*k,4)}, v{a_}, {WS}, s26 offen offset:{off} sc1")
        elif k < 25:
            if k == 20:
                e("s_add_u32 s26, s24, 20480")
            e(f"buffer_load_dwordx2 {vr(WOE+2*(k-20),2)}, v149, {WS}, s26 offen offset:{(k-20)*512} sc1")
        else:
            if k == 26:
                e("s_add_u32 s26, s25, 8192")
            e(f"buffer_load_dword v{GT+k-25}, v150, {WS}, {'s25' if k == 25 else 's26'} offen sc1")

    jobs = [(lambda k=k: wo_load(k)) for k in range(27)]
    na, nb = opt.get("wo_a", 27), opt.get("wo_b", 27)
    e.late = (jobs[na:nb], jobs[nb:])
    jobs = jobs[:na]
    poll(e, T1, 246, WS, "s57", f"v_cmp_ne_u32 vcc, 0, v{T1}", 0xfff, first_loaded=True)
    for ci in range(8):
        for w in "AB":
            n = 1 if w == "A" else 3
            side, jobs = jobs[:n], jobs[n:]
            attn_unit(e, w, ci, side=side)
    for a in (AK1, AK2, AV, AV + 1, AV + 2, AV + 3):
        e(f"v_add_u32 v{a}, {8*CH}, v{a}")
    e("s_mov_b32 s54, 2")
    if opt.get("solo"):
        e.stamp(12)
        e("s_barrier")
        e.stamp(6)
        e("s_mov_b32 s55, 1")
        if opt["solo"] == 1:
            e("s_cmp_ge_u32 s3, 4")
            e("s_cbranch_scc1 .Lattn_done")
    e.raw(".p2align 6")
    e.label(".Lattn_loop")
    for ci in range(8):
        attn_unit(e, "A", ci)
        attn_unit(e, "B", ci)
    for a in (AK1, AK2, AV, AV + 1, AV + 2, AV + 3):
        e(f"v_add_u32 v{a}, {8*CH}, v{a}")
    e("s_sub_u32 s54, s54, 1")
    e("s_cmp_lg_u32 s54, 0")
    e("s_cbranch_scc1 .Lattn_loop")
    e.label(".Lattn_done")
    e(pv(OB, 3, Y_))
    e(f"buffer_load_dword v254, v250, {WS}, s20 offen sc1")
    e("s_waitcnt lgkmcnt(0)")
    e.stamp(7)
    e(f"v_mov_b32 v4, v{OA+10}")
    e(f"v_lshlrev_b32 v2, 4, {L}")
    e(f"v_lshlrev_b32 v3, 2, {L}")
    e(f"v_permlane32_swap_b32 v{OA+10}, v4")
    e("s_lshl_b32 s56, s48, 16")
    e("s_lshl_b32 s57, s49, 11")
    e("s_add_u32 s56, s56, s57")
    e(f"s_add_u32 s56, s56, {O1}")
    e(f"v_rcp_f32 v0, v{OA+10}")
    e("s_lshl_b32 s57, s48, 13")
    e("s_lshl_b32 s58, s49, 8")
    e("s_add_u32 s57, s57, s58")
    e(f"s_add_u32 s57, s57, {O2}")
    e(f"v_mov_b32 v4, v{OB+10}")
    for i in range(10):
        e(f"v_mul_f32 v{OA+i}, v0, v{OA+i}")
    e(f"v_permlane32_swap_b32 v{OB+10}, v4")
    for j in range(5):
        e(f"v_cvt_pk_bf16_f32 v{8+j}, v{OA+2*j}, v{OA+2*j+1}")
    e(f"v_rcp_f32 v1, v{OB+10}")
    e(f"buffer_store_dwordx4 v[8:11], v2, {WS}, s56 offen sc1")
    for i in range(10):
        e(f"v_mul_f32 v{OB+i}, v1, v{OB+i}")
    for j in range(5):
        e(f"v_cvt_pk_bf16_f32 v{16+j}, v{OB+2*j}, v{OB+2*j+1}")
    e(f"buffer_store_dwordx4 v[16:19], v2, {WS}, s56 offen offset:1024 sc1")
    e("v_mov_b32 v0, 0")
    e("v_permlane32_swap_b32 v12, v20")
    e("v_mov_b32 v1, 0")
    e(f"buffer_store_dword v12, v3, {WS}, s57 offen sc1")
    for i in range(10):
        e(f"v_fmac_f32 v0, 0, v{OA+i}")
        e(f"v_fmac_f32 v1, 0, v{OB+i}")
    e(f"v_add_f32 v0, v0, v{OA+10}")
    e(f"v_add_f32 v1, v1, v{OB+10}")
    e(f"s_mov_b32 s56, {f32(2.0**60)}")
    e(f"s_mov_b32 s57, {f32(2.0**-60)}")
    e("v_cmp_nge_f32 s[58:59], s56, v0")
    e("v_cmp_nle_f32 s[60:61], s57, v0")
    e("v_cmp_nge_f32 s[62:63], s56, v1")
    e("v_cmp_nle_f32 s[64:65], s57, v1")
    if opt.get("force_fallback"):
        e("s_mov_b64 s[58:59], -1")
    e("s_or_b64 s[58:59], s[58:59], s[60:61]")
    e("s_or_b64 s[62:63], s[62:63], s[64:65]")
    e("s_or_b64 s[58:59], s[58:59], s[62:63]")
    e("s_cselect_b32 s56, 1, 0")
    e("s_cmp_gt_u32 s56, s55")
    if not opt.get("nofb"):
        e("s_cbranch_scc1 .Lattn_fallback")


def gen_fallback(e):
    e.label(".Lattn_fallback")
    e("s_waitcnt vmcnt(0)")
    e("s_mov_b32 s55, 1")
    attn_addr_init(e)
    MA, MB = OA, OA + 1
    e(f"v_mov_b32 v{MA}, 0xff800000")
    e(f"v_mov_b32 v{MB}, 0xff800000")
    e(f"v_mov_b32 v{Q2A+1}, 0")
    e(f"v_mov_b32 v{Q2B+1}, 0")
    e("s_mov_b32 s54, 32")
    e.label(".Lattn_maxloop")
    e(f"ds_read_b128 {vr(K1LO,4)}, v{AK1}")
    e(f"ds_read_b128 {vr(K1HI,4)}, v{AK1} offset:1024")
    e(f"ds_read_b32 v{K2R}, v{AK2}")
    e("s_waitcnt lgkmcnt(0)")
    for buf, q1 in ((X_, Q1A), (Y_, Q1B)):
        e(f"v_mfma_f32_32x32x16_bf16 {vr(buf,16)}, {vr(K1LO,4)}, {vr(q1,4)}, 0")
        e(f"v_mfma_f32_32x32x16_bf16 {vr(buf+16,16)}, {vr(K1HI,4)}, {vr(q1,4)}, 0")
    e("s_nop 10")
    e(f"v_mfma_f32_32x32x4_2b_bf16 {vr(X_,32)}, {vr(K2R,2)}, {vr(Q2A,2)}, {vr(X_,32)}")
    e(f"v_mfma_f32_32x32x4_2b_bf16 {vr(Y_,32)}, {vr(K2R,2)}, {vr(Q2B,2)}, {vr(Y_,32)}")
    e("s_nop 15")
    e("s_nop 4")
    max_tree(e, MA, X_, 32, True)
    max_tree(e, MB, Y_, 32, True)
    e(f"v_add_u32 v{AK1}, {CH}, v{AK1}")
    e(f"v_add_u32 v{AK2}, {CH}, v{AK2}")
    e("s_sub_u32 s54, s54, 1")
    e("s_cmp_lg_u32 s54, 0")
    e("s_cbranch_scc1 .Lattn_maxloop")
    set_m(e, [(MA, OA + 2, Q2A + 1), (MB, OA + 3, Q2B + 1)])
    attn_addr_init(e)
    e(f"ds_read_b128 {vr(K1LO,4)}, v{AK1}")
    e(f"ds_read_b128 {vr(K1HI,4)}, v{AK1} offset:1024")
    e(f"ds_read_b32 v{K2R}, v{AK2}")
    for j in range(3):
        for r in rdV(j, 0):
            e(r)
    for i in range(32):
        e(f"v_mov_b32 v{OA+i}, 0")
    for i in range(8):
        e(f"v_mov_b32 v{Y_+24+i}, 0")
    e("s_waitcnt lgkmcnt(0)")
    e(f"v_mfma_f32_32x32x16_bf16 {vr(X_,16)}, {vr(K1LO,4)}, {vr(Q1A,4)}, 0")
    e(f"v_mfma_f32_32x32x16_bf16 {vr(X_+16,16)}, {vr(K1HI,4)}, {vr(Q1A,4)}, 0")
    e("s_nop 10")
    e(f"v_mfma_f32_32x32x4_2b_bf16 {vr(X_,32)}, {vr(K2R,2)}, {vr(Q2A,2)}, {vr(X_,32)}")
    e("s_nop 15")
    e("s_nop 4")
    e("s_mov_b32 s54, 4")
    e("s_branch .Lattn_loop")


def gen_out(e):
    L = f"v{LANE}"
    OFS, OE = (96, 112, 128, 80), 144
    nap, pdepth = e.opt.get("nap", 0), e.opt.get("pdepth", 0)
    e(f"v_and_b32 v246, 15, {L}")
    e(f"v_lshrrev_b32 v247, 4, {L}")
    e("v_lshrrev_b32 v3, 1, v247")
    e("v_lshlrev_b32 v3, 16, v3")
    e("v_and_b32 v4, 1, v247")
    e("v_lshl_add_u32 v3, v4, 9, v3")
    e("v_lshl_add_u32 v248, v246, 4, v3")
    e("s_lshr_b32 s61, s3, 2")
    e("s_lshl_b32 s61, s61, 4")
    e("s_and_b32 s62, s3, 3")
    e("s_add_u32 s61, s61, s62")
    e("s_lshl_b32 s58, s61, 17")
    e("s_lshl_b32 s59, s50, 11")
    e("s_add_u32 s58, s58, s59")
    e(f"s_add_u32 s58, s58, {O1}")
    for r in range(4):
        e(f"s_add_u32 s{62+r}, s4, {r + 1}")
        e(f"s_and_b32 s{62+r}, s{62+r}, 3")
        e(f"s_lshl_b32 s{62+r}, s{62+r}, 19")
        e(f"s_add_u32 s{62+r}, s{62+r}, s58")
    e("s_and_b32 s66, s4, 3")
    e("s_lshl_b32 s66, s66, 1")
    e("s_lshl_b32 s67, 3, s66")
    e("s_andn2_b32 s67, 0xff, s67")

    def o_loads(r):
        for tt in range(4):
            e(f"buffer_load_dwordx4 {vr(OFS[r]+4*tt,4)}, v248, {WS}, s{62+r} offen offset:{(tt//2)*1024+(tt%2)*256} sc1")

    def o_mfma(st, first=False):
        for tt in range(4):
            for tile in range(5):
                acc = vr((tt * 5 + tile) * 4, 4)
                e(f"v_mfma_f32_16x16x32_bf16 {acc}, {vr(WOM+20*st+4*tile,4)}, {vr(OFS[st]+4*tt,4)}, {'0' if first else acc}")

    def publish(pending):
        e("v_lshlrev_b32 v3, 16, v247")
        e("v_lshl_add_u32 v249, v246, 2, v3")
        e("v_mov_b32 v4, 0")
        e("s_lshl_b32 s59, s61, 14")
        e("s_lshl_b32 s60, s50, 8")
        e("s_add_u32 s59, s59, s60")
        e(f"s_add_u32 s59, s59, {O2}")
        e("s_add_u32 s61, s59, 8192")
        e(f"s_waitcnt vmcnt({pending})")
        e("s_mov_b64 exec, 1")
        e(f"buffer_store_dword v250, v4, {WS}, s21 offen sc1" if False else f"buffer_store_dword v{LANE + 1}, v4, {WS}, s21 offen sc1")
        e("s_mov_b64 exec, -1")
        e.stamp(8)
        e("s_barrier")
        e.stamp(9)

    def extra_loads():
        for tt in range(4):
            e(f"buffer_load_dword v{OE+2*tt}, v249, {WS}, s59 offen offset:{tt*64} sc1")
            e(f"buffer_load_dword v{OE+2*tt+1}, v249, {WS}, s61 offen offset:{tt*64} sc1")

    e(f"v_mov_b32 v{LANE + 1}, 1")
    e("s_waitcnt vmcnt(3)")
    e("v_cmp_ne_u32 vcc, 0, v254")
    e("s_and_b32 s68, vcc_lo, s67")
    e("s_cmp_eq_u32 s68, s67")
    e("s_branch .Lout_dyn" if e.opt.get("noearly") else "s_cbranch_scc0 .Lout_dyn")
    o_loads(0)
    o_loads(1)
    publish(8)
    e("s_waitcnt vmcnt(5)")
    e("s_branch .Lout_go")
    e.label(".Lout_dyn")
    publish(0)
    poll(e, 254, 250, WS, "s20", "v_cmp_ne_u32 vcc, 0, v254", "s67", nap=nap, depth=pdepth)
    o_loads(0)
    o_loads(1)
    e("s_waitcnt vmcnt(4)")
    e.label(".Lout_go")
    e.stamp(10)
    o_loads(2)
    e(f"buffer_load_dword v254, v250, {WS}, s20 offen sc1")
    o_mfma(0, True)
    e("s_waitcnt vmcnt(5)")
    o_mfma(1)
    poll(e, 254, 250, WS, "s20", "v_cmp_ne_u32 vcc, 0, v254", 0xff, first_loaded=True, nap=nap, depth=pdepth)
    o_loads(3)
    extra_loads()
    o_mfma(2)
    e("s_waitcnt vmcnt(8)")
    o_mfma(3)
    e.label(".Lout_extra")
    e("s_mul_i32 s58, s3, 18432")
    e(f"v_lshl_add_u32 v244, {L}, 4, s58")
    e("s_and_b32 s58, s3, 3" if e.opt.get("rrole", 2) else "s_lshr_b32 s58, s3, 1")
    e("s_mul_i32 s59, s58, 4608")
    e("s_lshr_b32 s60, s3, 2" if e.opt.get("rrole", 2) else "s_and_b32 s60, s3, 1")
    if e.opt.get("rrole", 2) == 2:
        e("s_xor_b32 s60, s60, 1")
    e("s_lshl_b32 s61, s60, 11")
    e("s_add_u32 s59, s59, s61")
    e(f"v_lshl_add_u32 v245, {L}, 4, s59")
    e(f"v_add_u32 v250, {3*18432}, v245")
    e(f"v_add_u32 v251, {6*18432}, v245")
    e(f"v_cmp_gt_u32 vcc, 32, {L}")
    e("v_mov_b32 v253, 0x40000")
    e("s_nop 0")
    e("v_cndmask_b32 v253, v253, v244, vcc")
    e("s_waitcnt vmcnt(0)")
    pend = []
    for tt in range(4):
        for tile in range(5):
            acc = vr((tt * 5 + tile) * 4, 4)
            e(f"v_mfma_f32_16x16x16_bf16 {acc}, {vr(WOE+2*tile,2)}, {vr(OE+2*tt,2)}, {acc}")
            pend.append(f"ds_write_b128 v{244 if tile < 4 else 253}, {acc} offset:{tt*4608 + tile*1024}")
            if len(pend) > 8:
                e(pend.pop(0))
    e.stamp(11)
    e("s_nop 3")
    for x in pend:
        e(x)
    srd(e, 20, 42, 2048 * 1152)
    e("s_lshl_b32 s59, s50, 6")
    e("s_lshl_b32 s58, s58, 4")
    e("s_add_u32 s59, s59, s58")
    e("v_add_u32 v84, s59, v246")
    e("v_mul_u32_u24 v84, 1152, v84")
    e("v_lshl_add_u32 v85, v247, 3, v84")
    e("v_lshl_add_u32 v84, v247, 4, v84")
    e("s_mul_i32 s59, s51, 144")
    e("s_lshl_b32 s61, s60, 6")
    e("s_add_u32 s61, s61, s59")
    e("s_waitcnt lgkmcnt(0)")
    e("s_barrier")
    e.stamp(12)

    def rd(dst, src, off):
        a, o = (245, 250, 251)[src // 3], (src % 3) * 18432 + off
        e(f"ds_read_b128 {vr(dst,4)}, v{a} offset:{o}")

    def tree(b):
        for step in (1, 2):
            for k in range(0, 8, 2 * step):
                for h in range(2):
                    e(f"v_pk_add_f32 {vr(b+4*k+2*h,2)}, {vr(b+4*k+2*h,2)}, {vr(b+4*(k+step)+2*h,2)}")
        for j in range(4):
            e(f"v_mul_f32 v{b+j}, v{GT}, v{b+j}")
        for j in range(4):
            e(f"v_fmac_f32 v{b+j}, v{GT+1}, v{b+16+j}")

    for t in range(2):
        for src in range(8):
            rd(t * 32 + 4 * src, src, t * 1024)
    e("s_waitcnt lgkmcnt(8)")
    tree(0)
    e("v_cvt_pk_bf16_f32 v88, v0, v1")
    e("v_cvt_pk_bf16_f32 v89, v2, v3")
    e("s_cmp_eq_u32 s60, 0")
    e("s_cbranch_scc1 .Lout_half0")
    for src in range(8):
        rd(96 + 4 * src, src, 2048)
    e("s_waitcnt lgkmcnt(8)")
    tree(32)
    e("v_cvt_pk_bf16_f32 v90, v32, v33")
    e("v_cvt_pk_bf16_f32 v91, v34, v35")
    e(f"buffer_store_dwordx4 v[88:91], v84, s[20:23], s61 offen{['', ' nt', ' sc1', ' sc0 sc1'][e.opt.get('ont', 0)]}")
    e("s_waitcnt lgkmcnt(0)")
    tree(96)
    e("v_cvt_pk_bf16_f32 v92, v96, v97")
    e("v_cvt_pk_bf16_f32 v93, v98, v99")
    e("s_mov_b32 exec_hi, 0")
    e(f"buffer_store_dwordx2 v[92:93], v85, s[20:23], s59 offen offset:128{['', ' nt', ' sc1', ' sc0 sc1'][e.opt.get('ont', 0)]}")
    e("s_mov_b32 exec_hi, -1")
    e("s_branch .Lout_fin")
    e.label(".Lout_half0")
    e("s_waitcnt lgkmcnt(0)")
    tree(32)
    e("v_cvt_pk_bf16_f32 v90, v32, v33")
    e("v_cvt_pk_bf16_f32 v91, v34, v35")
    e(f"buffer_store_dwordx4 v[88:91], v84, s[20:23], s61 offen{['', ' nt', ' sc1', ' sc0 sc1'][e.opt.get('ont', 0)]}")
    e.label(".Lout_fin")
    if "echoA" in e.opt:
        a, b = 72 + 2 * e.opt["echoA"], 72 + 2 * e.opt["echoB"]
        e("s_waitcnt vmcnt(0)")
        e.stamp(13)
        e(f"s_sub_u32 s60, s{b}, s{a}")
        e("s_add_u32 s60, s60, s98")
        e.label(".Lecho")
        e("s_memrealtime s[62:63]")
        e("s_waitcnt lgkmcnt(0)")
        e("s_sub_u32 s61, s62, s60")
        e("s_cmp_lt_i32 s61, 0")
        e("s_cbranch_scc1 .Lecho")
        e("s_endpgm")
    if getattr(e, "final", 0):
        e.opt = dict(e.opt, stamp=e.final)
    if e.opt.get("stamp"):
        e("s_waitcnt vmcnt(0)")
        e.stamp(13)
        e("s_lshl_b32 s68, s2, 3")
        e("s_add_u32 s68, s68, s3")
        e("s_lshl_b32 s68, s68, 7")
        e(f"s_add_u32 s68, s68, {STAMP}")
        e("s_mov_b64 exec, 1")
        e("v_mov_b32 v0, 0")
        for k in range(7):
            for j in range(4):
                e(f"v_mov_b32 v{4+j}, s{72+4*k+j}")
            e(f"buffer_store_dwordx4 v[4:7], v0, {WS}, s68 offen offset:{16*k}")
            e("s_nop 1")


HEAD = """; Kernarg layout for this problem (80 bytes, ptrs only, base s[0:1]):
"""


DOC = """;
"""


def generate(opt=None):
    opt = opt or {}
    e = E(opt)
    n = NAME + "_kernel"
    e.raw(HEAD.rstrip())
    lst = opt.get("aslist", 0)
    if lst in (2, 4):
        e.raw(f"; @launch kernel=nop_kernel grid=(256,1,1) block=({256 if lst == 2 else 512},1,1) lds={0 if lst == 2 else LDS_BYTES}")
    if lst:
        e.raw(f"; @launch kernel={n} grid=(256,1,1) block=(512,1,1) lds={LDS_BYTES}")
    else:
        e.raw(f"; @launch grid=(256,1,1) block=(512,1,1) lds={LDS_BYTES}")
    if lst in (3, 5):
        e.raw(f"; @launch kernel=nop_kernel grid=(256,1,1) block=({256 if lst == 3 else 512},1,1) lds={0 if lst == 3 else LDS_BYTES}")
    e.raw(DOC.rstrip())
    e.raw('.amdgcn_target "amdgcn-amd-amdhsa--gfx950"')
    if lst > 1:
        e.raw(".text\n.globl nop_kernel\n.p2align 8\n.type nop_kernel,@function\nnop_kernel:\n    s_endpgm")
        e.raw('.section .rodata,"a"\n.p2align 6\n.amdhsa_kernel nop_kernel')
        e.raw(f"  .amdhsa_next_free_vgpr {8 if lst < 4 else 256}\n  .amdhsa_next_free_sgpr 16\n  .amdhsa_accum_offset {8 if lst < 4 else 256}")
        e.raw("  .amdhsa_group_segment_fixed_size 0\n  .amdhsa_kernarg_size 80\n  .amdhsa_user_sgpr_count 2\n  .amdhsa_user_sgpr_kernarg_segment_ptr 1\n  .amdhsa_system_sgpr_workgroup_id_x 1\n.end_amdhsa_kernel")
    e.raw(".text")
    e.raw(f".globl {n}")
    e.raw(".p2align 8")
    e.raw(f".type {n},@function")
    e.label(n)
    e("s_cmp_ge_u32 s2, 256")
    e("s_cbranch_scc1 .Lend")
    e.stamp(0)
    e("s_load_dwordx16 s[28:43], s[0:1], 0")
    e("s_load_dwordx4 s[44:47], s[0:1], 64")
    e("v_lshrrev_b32 v1, 6, v0")
    e(f"v_and_b32 v{LANE}, 63, v0")
    e("v_readfirstlane_b32 s3, v1")
    e("s_and_b32 s4, s2, 7")
    e("s_lshr_b32 s5, s2, 3")
    e("s_getreg_b32 s6, hwreg(HW_REG_XCC_ID, 0, 4)")
    e("s_add_u32 s6, s6, 1")
    e("s_lshr_b32 s48, s5, 1")
    e("s_and_b32 s49, s5, 1")
    e("s_cmp_ge_u32 s3, 4")
    e("s_cbranch_scc0 .Lconsumer")
    gen_loader(e)
    e.label(".Lconsumer")
    gen_consumer(e)
    attn_setup(e)
    e.label(".Lp2_join")
    gen_attn(e)
    gen_out(e)
    e.label(".Lend")
    e("s_endpgm")
    gen_fallback(e)
    e.raw('.section .rodata,"a"')
    e.raw(".p2align 6")
    e.raw(f".amdhsa_kernel {n}")
    e.raw("  .amdhsa_next_free_vgpr 256")
    e.raw("  .amdhsa_next_free_sgpr 100")
    e.raw("  .amdhsa_accum_offset 256")
    e.raw("  .amdhsa_group_segment_fixed_size 0")
    e.raw("  .amdhsa_kernarg_size 80")
    e.raw("  .amdhsa_user_sgpr_count 2")
    e.raw("  .amdhsa_user_sgpr_kernarg_segment_ptr 1")
    e.raw("  .amdhsa_system_sgpr_workgroup_id_x 1")
    e.raw(".end_amdhsa_kernel")
    return e.text()


if __name__ == "__main__":
    out = f"cdna_kernels/{NAME}.s"
    opt = {}
    for a in sys.argv[1:]:
        if a.startswith("-o="):
            out = a[3:]
        else:
            k, v = a.split("=")
            opt[k] = tuple(int(x) for x in v.split(",")) if k == "keep" else int(v)
    open(out, "w").write(generate(opt))
    print("wrote", out)
```

```python
import math, struct, sys

NAME = "gated_mix__softmax_full_mha__softmax_full_mha__prompt"

CH = 4864
VX, VM = 2176, 2816
KVSZ = 32 * CH
QCH = 2304
QOFF = KVSZ
HS = KVSZ + 32 * QCH
GATE = 64 * HS
FLG = GATE + 16384
F1L, F1G, F2, FW, FO = FLG, FLG + 1024, FLG + 2048, FLG + 3072, FLG + 4096
O1 = 15 * 1024 * 1024
O2 = O1 + 64 * 65536
WOP = O2 + 64 * 8192
WSET = 23040
WS_BYTES = 268435456
STAMP = 32 * 1024 * 1024
OOB = 0x80000000
SPIN = 3000000

QSCALE = (18 ** -0.5) * math.log2(math.e)
WSLOT, XSLOT, XB = 32768, 16384, 98304
LDS_BYTES = KVSZ + CH

LANE, AV0, T0, T1 = 252, 253, 254, 255
WG = 220
GX = 152
PIECE = 21
WS = "s[8:11]"


def f32(x):
    return "0x%08x" % struct.unpack("<I", struct.pack("<f", x))[0]


class E:
    def __init__(s, opt):
        s.l = []
        s.opt = opt
        s.n = 0

    def __call__(s, x):
        s.l.append("    " + x)

    def label(s, x):
        s.l.append(x + ":")

    def raw(s, x):
        s.l.append(x)

    def uid(s, p):
        s.n += 1
        return f".L{p}{s.n}"

    def stamp(s, slot):
        m = s.opt.get("stamp")
        if m == 3:
            if slot not in (0, 13) and slot not in s.opt.get("keep", ()):
                return
            m = 1
        if m:
            b = 72 + 2 * slot
            s(f"{'s_memrealtime' if m == 1 else 's_memtime'} s[{b}:{b+1}]")
            s("s_waitcnt lgkmcnt(0)")

    def text(s):
        return "\n".join(s.l) + "\n"


def vr(b, n):
    return f"v[{b}:{b+n-1}]" if n > 1 else f"v{b}"


def srd(e, d, ptr, nbytes):
    e(f"s_mov_b32 s{d}, s{ptr}")
    e(f"s_mov_b32 s{d+1}, s{ptr+1}")
    e(f"s_mov_b32 s{d+2}, {nbytes}")
    e(f"s_mov_b32 s{d+3}, 0x00020000")


def poll(e, vdst, vaddr, rsrc, soff, cmp, mask, first_loaded=False, nap=0, depth=0):
    top, done, ld = e.uid("poll"), e.uid("polld"), e.uid("polll")
    e(f"s_mov_b32 s70, {SPIN}")
    if isinstance(mask, str):
        e(f"s_mov_b32 s68, {mask}")
        e("s_mov_b32 s69, 0")
    else:
        e(f"s_mov_b32 s68, {mask & 0xffffffff:#x}")
        e(f"s_mov_b32 s69, {mask >> 32:#x}")
    if depth:
        if not first_loaded:
            e(f"buffer_load_dword v{vdst}, v{vaddr}, {rsrc}, {soff} offen sc1")
        e("s_waitcnt vmcnt(0)")
        e(cmp)
        e("s_and_b64 vcc, vcc, s[68:69]")
        e("s_cmp_eq_u64 vcc, s[68:69]")
        e(f"s_cbranch_scc1 {done}")
        for _ in range(depth):
            e(f"buffer_load_dword v{vdst}, v{vaddr}, {rsrc}, {soff} offen sc1")
            if nap:
                e(f"s_sleep {nap}")
    elif first_loaded:
        e(f"s_branch {ld}")
    e.label(top)
    e(f"buffer_load_dword v{vdst}, v{vaddr}, {rsrc}, {soff} offen sc1")
    if first_loaded and not depth:
        e.label(ld)
    e(f"s_waitcnt vmcnt({depth})")
    e(cmp)
    e("s_and_b64 vcc, vcc, s[68:69]")
    e("s_cmp_eq_u64 vcc, s[68:69]")
    e(f"s_cbranch_scc1 {done}")
    if nap:
        e(f"s_sleep {nap}")
    e("s_sub_u32 s70, s70, 1")
    e("s_cmp_lg_u32 s70, 0")
    e(f"s_cbranch_scc1 {top}")
    e.label(done)


def wo_job_addr(e, dst, s_tile, s_row, is_extra_sel, s_valid):
    e(f"s_lshr_b32 s60, {s_tile}, 1")
    e("s_lshl_b32 s60, s60, 5")
    e(f"s_and_b32 s61, {s_tile}, 1")
    e("s_lshl_b32 s61, s61, 2")
    e("s_add_u32 s60, s60, s61")
    e("s_add_u32 s60, s60, s58")
    e(f"s_cmp_eq_u32 {s_tile}, 4")
    e("s_cselect_b64 vcc, -1, 0")
    e("s_cselect_b32 s61, 8, 16")
    e(f"s_min_u32 s61, s61, {s_valid}")
    e("v_cndmask_b32 v4, v3, v1, vcc")
    e("v_add_u32 v4, s60, v4")
    e(f"v_cndmask_b32 v5, v6, v7, {is_extra_sel}")
    e(f"v_add_u32 v5, {s_row}, v5")
    e("v_mul_u32_u24 v5, 1152, v5")
    e("v_lshl_add_u32 v5, v4, 1, v5")
    e("v_cmp_gt_u32 vcc, s61, v1")
    e(f"v_mov_b32 v4, {OOB:#x}")
    e("s_nop 0")
    e(f"v_cndmask_b32 v{dst}, v4, v5, vcc")


def w_prefetch_addr(e, dst):
    L = f"v{LANE}"
    e("s_mul_i32 s52, s5, 2")
    e(f"v_mul_u32_u24 v2, 57, {L}")
    e("v_lshrrev_b32 v2, 9, v2")
    e("v_mul_u32_u24 v3, 9, v2")
    e(f"v_sub_u32 v3, {L}, v3")
    e("v_add_u32 v2, s52, v2")
    e("v_mul_u32_u24 v4, 11, v3")
    e("v_lshrrev_b32 v4, 5, v4")
    e("v_mul_u32_u24 v4, 768, v4")
    e("v_lshl_add_u32 v4, v3, 7, v4")
    e("v_mul_u32_u24 v2, 3456, v2")
    e("s_and_b32 s52, s4, 3")
    e("s_lshl_b32 s52, s52, 8")
    e("v_add3_u32 v2, v2, v4, s52")
    e(f"v_cmp_gt_u32 vcc, 18, {L}")
    e(f"v_mov_b32 v5, {OOB:#x}")
    e(f"v_and_b32 v3, {1 if e.opt.get('xpf') else 3}, {L}")
    if e.opt.get("xpf"):
        e("v_or_b32 v3, 2, v3")
    e("v_cndmask_b32 v2, v5, v2, vcc")
    e("v_cmp_eq_u32 vcc, s3, v3")
    e("s_nop 1")
    e(f"v_cndmask_b32 v{dst}, v5, v2, vcc")


def gen_loader(e):
    opt = e.opt
    L = f"v{LANE}"
    e("s_sub_u32 s50, s3, 4")
    if opt.get("lprio"):
        e(f"s_setprio {opt['lprio']}")
    e(f"v_lshrrev_b32 v1, 3, {L}")
    e(f"v_and_b32 v2, 7, {L}")
    e(f"v_lshrrev_b32 v3, 4, {L}")
    e("v_xor_b32 v4, v2, v3")
    e("v_xor_b32 v5, 4, v4")
    e("s_lshl_b32 s51, s48, 7")
    if opt.get("x_samex"):
        e("s_mov_b32 s51, 0")
    e("s_lshl_b32 s52, s50, 5")
    e("s_add_u32 s51, s51, s52")
    e("v_add_u32 v1, s51, v1")
    e("v_mul_u32_u24 v1, 1152, v1")
    for j in range(4):
        e(f"v_lshl_add_u32 v{10+j}, v{4 + j % 2}, 4, v1")
        if j:
            e(f"v_add_u32 v{10+j}, {j*8*1152}, v{10+j}")
    e("s_lshl_b32 s56, s50, 12")
    e(f"s_add_u32 s56, s56, {XB}")
    e("s_lshl_b32 s57, s50, 10")
    e("s_and_b32 s52, s4, 3")
    e("s_mul_i32 s52, s52, 288")
    e("s_and_b32 s53, s52, 0xffc0")
    e("s_add_u32 s54, s52, 144")
    e("s_and_b32 s54, s54, 0xffc0")
    e("s_add_u32 s54, s54, 1152")
    e(f"s_mov_b32 s55, {2304-192}")
    e("s_cmp_eq_u32 s49, 0")
    e("s_cselect_b32 s54, s53, s54")
    e(f"s_cselect_b32 s55, {1152-320}, s55")
    e("s_cselect_b32 s58, 20, 12")
    e("s_add_u32 s55, s55, s53")
    e(f"v_lshrrev_b32 v1, 5, {L}")
    e("v_lshlrev_b32 v2, 1, v1")
    e(f"v_xor_b32 v2, {L}, v2")
    e("s_and_b32 s59, s50, 1")
    e("s_lshl_b32 s59, s59, 2")
    e("v_subrev_u32 v2, s59, v2")
    e("s_lshl_b32 s59, s50, 1")
    e("v_add_u32 v1, s59, v1")
    e("v_mul_u32_u24 v1, 3456, v1")
    e("v_mov_b32 v5, s54")
    e("v_mov_b32 v6, s55")
    for h in range(2):
        if h:
            e("v_subrev_u32 v2, 8, v2")
        e("v_and_b32 v3, 31, v2")
        e("v_cmp_gt_u32 vcc, s58, v3")
        e("v_lshl_add_u32 v3, v3, 4, v1")
        e("s_nop 0")
        e("v_cndmask_b32 v4, v6, v5, vcc")
        e(f"v_add_u32 v{14+h}, v3, v4")

    def issue_x(stage):
        e(f"s_mov_b32 s60, {stage*128}")
        for j in range(4):
            e(f"s_add_u32 m0, s56, {(stage % 3) * XSLOT + j*1024}")
            e("s_nop 0")
            e(f"buffer_load_dwordx4 v{10+j}, s[12:15], s60 offen lds")

    def issue_w(stage, js):
        for j in js:
            e(f"s_add_u32 m0, s57, {(stage % 3) * WSLOT + j*4096}")
            e(f"s_mov_b32 s61, {(stage*64 + j*8)*3456}")
            e(f"buffer_load_dwordx4 v{14 + j % 2}, s[16:19], s61 offen lds")

    def touch():
        e("s_lshl_b32 s58, s4, 3")
        e("s_lshr_b32 s59, s5, 2")
        e("s_add_u32 s58, s58, s59")
        e(f"s_mul_i32 s58, s58, {HS}")
        e("s_and_b32 s59, s5, 3")
        e("s_lshl_b32 s59, s59, 2")
        e("s_add_u32 s59, s59, s50")
        e(f"s_mul_i32 s60, s59, {2*QCH}")
        e(f"s_add_u32 s60, s60, {QOFF}")
        e("s_mul_i32 s59, s59, 2560")
        e(f"s_sub_u32 s59, s59, {36*128}")
        e("v_mov_b32 v1, s59")
        e("v_mov_b32 v2, s60")
        e(f"v_cmp_gt_u32 vcc, 36, {L}")
        e(f"v_mov_b32 v3, {OOB:#x}")
        e("s_nop 0")
        e("v_cndmask_b32 v1, v1, v2, vcc")
        e(f"v_lshl_add_u32 v1, {L}, 7, v1")
        e(f"v_cmp_gt_u32 vcc, 56, {L}")
        e("s_nop 1")
        e("v_cndmask_b32 v1, v3, v1, vcc")
        e(f"buffer_load_dword v23, v1, {WS}, s58 offen sc1{' nt' if opt.get('tnt') else ''}")

    def counter_load():
        srd(e, 24, 44, 256)
        e(f"v_lshlrev_b32 v57, 6, {L}")
        e("buffer_load_dword v58, v57, s[24:27], 0 offen sc1")

    def gate_loads():
        srd(e, 20, 40, 1152)
        e("s_lshl_b32 s52, s4, 8")
        e("s_lshl_b32 s53, s5, 3")
        e("s_add_u32 s52, s52, s53")
        e("s_lshl_b32 s53, s50, 1")
        e("s_add_u32 s52, s52, s53")
        e(f"v_lshrrev_b32 v1, 5, {L}")
        e("v_add_u32 v1, s52, v1")
        e(f"v_and_b32 v4, 31, {L}")
        e("v_mul_u32_u24 v2, 36, v4")
        e("v_mov_b32 v3, 1152")
        e("v_mad_u32_u24 v3, v1, v3, v2")
        e(f"buffer_load_dwordx4 {vr(GX,4)}, v3, s[12:15], 0 offen")
        e(f"buffer_load_dwordx4 {vr(GX+4,4)}, v3, s[12:15], 0 offen offset:16")
        e(f"buffer_load_dword v{GX+8}, v3, s[12:15], 0 offen offset:32")
        e(f"buffer_load_dwordx4 {vr(GX+12,4)}, v2, s[20:23], 0 offen")
        e(f"buffer_load_dwordx4 {vr(GX+16,4)}, v2, s[20:23], 0 offen offset:16")
        e(f"buffer_load_dword v{GX+20}, v2, s[20:23], 0 offen offset:32")
        e("v_lshlrev_b32 v1, 2, v1")
        e("v_cmp_eq_u32 vcc, 0, v4")
        e(f"v_mov_b32 v5, {OOB:#x}")
        e(f"v_mov_b32 v{GX+9}, 0")
        e(f"v_cndmask_b32 v{GX+22}, v5, v1, vcc")

    def wo_gather():
        e(f"v_and_b32 v1, 15, {L}")
        e(f"v_lshrrev_b32 v2, 4, {L}")
        e("v_lshrrev_b32 v3, 2, v1")
        e("v_and_b32 v4, 3, v1")
        e("v_lshl_add_u32 v3, v3, 3, v4")
        e("v_lshrrev_b32 v6, 1, v2")
        e("v_mul_u32_u24 v6, 20, v6")
        e("v_and_b32 v4, 1, v2")
        e("v_lshl_add_u32 v6, v4, 3, v6")
        e("v_mul_u32_u24 v7, 144, v2")
        e("s_lshr_b32 s58, s2, 5")
        e("s_mul_i32 s58, s58, 72")
        e("s_bfe_u32 s59, s2, 0x20002")
        e("s_mul_i32 s59, s59, 36")
        e("s_and_b32 s62, s2, 3")
        e("s_mul_i32 s63, s62, 144")
        e("s_add_u32 s63, s63, s59")
        e("s_add_u32 s59, s59, 16")
        e("s_mov_b64 s[64:65], 0")
        e("s_mov_b32 s66, 16")
        wo_job_addr(e, 24, "s50", "s63", "s[64:65]", "s66")
        e("s_cmp_eq_u32 s50, 1")
        e("s_cselect_b32 s67, s62, 4")
        e("s_cmp_eq_u32 s62, 0")
        e("s_cselect_b32 s66, 3, 2")
        e("s_cmp_lt_u32 s50, s66")
        e("s_cselect_b32 s66, 16, 0")
        e("s_cmp_ge_u32 s50, 1")
        e("s_cselect_b64 s[64:65], -1, 0")
        e("s_cselect_b32 s71, s59, s63")
        wo_job_addr(e, 25, "s67", "s71", "s[64:65]", "s66")
        e("s_bitcmp1_b32 s2, 4")
        e("s_cselect_b32 s20, s38, s32")
        e("s_cselect_b32 s21, s39, s33")
        e(f"s_mov_b32 s22, {576*1152}")
        e("s_mov_b32 s23, 0x00020000")
        e(f"s_mov_b32 s60, {4*1152}")
        for job in range(2):
            for j in range(8):
                so = "0" if j < 4 else "s60"
                e(f"buffer_load_ushort v{WG+8*job+j}, v{24+job}, s[20:23], {so} offen offset:{(j%4)*1152}{' nt' if opt.get('wont') else ''}")

    lag = opt.get("lag", 0)
    order = []

    def do(item):
        k, st = item[:2]
        if k == "x":
            issue_x(st)
            order.append((k, st, 4))
        elif k == "w":
            for j in item[2]:
                issue_w(st, [j])
                order.append((k, st, 1, j))
        elif k == "t":
            touch()
            order.append((k, st, 1))
        elif k == "g":
            counter_load()
            order.append((k, st, 1))

    head, tail = range(0, 8 - lag), range(8 - lag, 8)
    e("s_waitcnt lgkmcnt(0)")
    common_srds(e)
    for it in [("x", 0), ("w", 0, range(8)), ("x", 1), ("w", 1, head)]:
        do(it)

    def after(pred):
        idx = max(k for k, o in enumerate(order) if pred(o))
        return sum(o[2] for o in order[idx+1:])

    for s in range(9):
        if s == 8:
            e(f"s_waitcnt vmcnt({after(lambda o: o[0] == 'w' and o[1] == 8 and o[3] == 3)})")
            e("s_barrier")
        e(f"s_waitcnt vmcnt({after(lambda o: o[0] in 'xw' and o[1] == s)})")
        if opt.get("lstamp") == 2:
            e.stamp(2 + s)
        e("s_barrier")
        if opt.get("lstamp") == 1:
            e.stamp(2 + s)
        if s == 0:
            e.stamp(1)
        if s + 1 <= 8:
            do(("w", s + 1, tail))
        if s + 2 <= 8:
            do(("x", s + 2))
            do(("w", s + 2, head))
        if s == opt.get("gpos", 7):
            do(("g", 0))
        if s == opt.get("touch", 7):
            do(("t", 0))
    e(f"s_waitcnt vmcnt({1 if order[-1][0] == 't' else 0})")
    gate_loads()
    if opt.get("lstamp"):
        e.final = opt["stamp"]
        e.opt = dict(opt, stamp=0)
    e.stamp(2)
    e("s_cmp_eq_u32 s3, 4")
    e("s_cbranch_scc1 .Lwave4")
    wo_gather()
    sm = opt.get("sidemode", 1)
    if sm == 1:
        e("s_waitcnt vmcnt(0)")
        side_calc(e)
    attn_setup(e)
    e("s_barrier")
    e.stamp(3)
    e("s_branch .Lp2_join")
    e.label(".Lwave4")
    e("v_cmp_le_u32 vcc, 64, v58")
    e("s_and_b32 s68, vcc_lo, 15")
    e("s_cmp_eq_u32 s68, 15")
    e("s_cbranch_scc1 .Lcleared")
    poll(e, 58, 57, "s[24:27]", "0", "v_cmp_le_u32 vcc, 64, v58", 0xf)
    e.label(".Lcleared")
    e("s_lshl_b32 s71, s4, 7")
    e(f"s_add_u32 s71, s71, {F1L}")
    e(f"v_and_b32 v13, 31, {L}")
    e("v_lshlrev_b32 v13, 2, v13")
    e(f"buffer_load_dword v14, v13, {WS}, s71 offen sc1")
    e("s_mov_b32 s7, s71")
    wo_gather()
    attn_setup(e)
    e("s_lshl_b32 s61, s5, 2")
    e("v_mov_b32 v11, s61")
    e("v_mov_b32 v12, s6")
    e(f"s_mov_b32 s70, {SPIN}")
    e("s_barrier")
    e.stamp(3)
    e("s_mov_b64 exec, 1")
    e(f"buffer_store_dword v12, v11, {WS}, s7 offen")
    e("s_mov_b64 exec, -1")
    e.label(".Lsync1")
    e(f"buffer_load_dword v14, v13, {WS}, s7 offen sc1")
    e("s_waitcnt vmcnt(0)")
    e("v_cmp_eq_u32 vcc, s6, v14")
    e("s_cmp_eq_u32 vcc_lo, -1")
    e("s_cbranch_scc1 .Lsync1_far" if opt.get("forceslow") else "s_cbranch_scc1 .Lp2_join")
    e("s_sub_u32 s70, s70, 1")
    e("s_and_b32 s68, s70, 31")
    e("s_cbranch_scc1 .Lsync1")
    e("s_mov_b64 exec, 1")
    e(f"buffer_store_dword v12, v11, {WS}, s7 offen offset:1024 sc1")
    e("s_mov_b64 exec, -1")
    e(f"buffer_load_dword v14, v13, {WS}, s7 offen offset:1024 sc1")
    e("s_waitcnt vmcnt(0)")
    e("v_cmp_eq_u32 vcc, s6, v14")
    e("v_cmp_eq_u32 s[68:69], 0, v14")
    e("s_cmp_eq_u32 vcc_lo, -1")
    e("s_cbranch_scc1 .Lp2_join")
    e("s_or_b32 s68, s68, vcc_lo")
    e("s_cmp_eq_u32 s68, -1")
    e("s_cbranch_scc0 .Lsync1_far")
    e("s_cmp_gt_u32 s70, 32")
    e("s_cbranch_scc1 .Lsync1")
    e.label(".Lsync1_far")
    e("buffer_wbl2 sc1")
    e("s_waitcnt vmcnt(0)")
    e("s_add_u32 s7, s7, 2048")
    e("s_mov_b64 exec, 1")
    e(f"buffer_store_dword v12, v11, {WS}, s7 offen sc1")
    e("s_mov_b64 exec, -1")
    poll(e, 14, 13, WS, "s7", "v_cmp_ne_u32 vcc, 0, v14", 0xffffffff)
    e("buffer_inv sc1")
    e("s_waitcnt vmcnt(0)")
    e("s_branch .Lp2_join")


def side_calc(e):
    z, t = GX + 9, GX + 10
    for j in range(9):
        e(f"v_dot2c_f32_bf16 v{z}, v{GX+j}, v{GX+12+j}")
    e("s_nop 2")
    for ctl in ("quad_perm:[1,0,3,2]", "quad_perm:[2,3,0,1]", "row_half_mirror", "row_mirror"):
        e(f"v_add_f32_dpp v{z}, v{z}, v{z} {ctl} row_mask:0xf bank_mask:0xf")
        e("s_nop 1")
    e(f"v_mov_b32 v{t}, v{z}")
    e("s_nop 1")
    e(f"v_permlane16_swap_b32 v{z}, v{t}")
    e("s_nop 1")
    e(f"v_add_f32 v{z}, v{z}, v{t}")
    e(f"v_mul_f32 v{z}, {f32(-math.log2(math.e))}, v{z}")
    e(f"v_exp_f32 v{z}, v{z}")
    e("s_nop 0")
    e(f"v_add_f32 v{z}, 1.0, v{z}")
    e(f"v_rcp_f32 v{z}, v{z}")
    e("s_nop 0")
    e(f"v_sub_f32 v{t}, 1.0, v{z}")
    for job in range(2):
        for j in range(4):
            e(f"v_lshl_or_b32 v{WG+8*job+j}, v{WG+8*job+2*j+1}, 16, v{WG+8*job+2*j}")


def wo_store(e):
    L = f"v{LANE}"
    e("s_cmp_ge_u32 s3, 4")
    e("s_cbranch_scc0 .Lwo_done")
    z, t = GX + 9, GX + 10
    if e.opt.get("sidemode", 1) == 1:
        e("s_cmp_eq_u32 s3, 4")
        e("s_cbranch_scc0 .Lside_ready")
    side_calc(e)
    e.label(".Lside_ready")
    e(f"s_mov_b32 s60, {GATE}")
    e(f"s_mov_b32 s61, {GATE + 8192}")
    e(f"buffer_store_dword v{z}, v{GX+22}, {WS}, s60 offen sc1")
    e(f"buffer_store_dword v{t}, v{GX+22}, {WS}, s61 offen sc1")
    e("s_lshr_b32 s60, s2, 2")
    e(f"s_mul_i32 s60, s60, {WSET}")
    e(f"s_add_u32 s60, s60, {WOP}")
    e("s_mul_i32 s61, s62, 5120")
    e("s_add_u32 s61, s61, s60")
    e("s_sub_u32 s63, s3, 4")
    e("s_lshl_b32 s63, s63, 10")
    e("s_add_u32 s63, s63, s61")
    e(f"buffer_store_dwordx4 {vr(WG,4)}, v{AK1}, {WS}, s63 offen sc1")
    e("s_cmp_eq_u32 s66, 0")
    e("s_cbranch_scc1 .Lwo_done")
    e("s_cmp_eq_u32 s3, 4")
    e("s_cbranch_scc0 .Lwo_extra")
    e("s_add_u32 s61, s61, 4096")
    e(f"buffer_store_dwordx4 {vr(WG+8,4)}, v{AK1}, {WS}, s61 offen sc1")
    e("s_branch .Lwo_done")
    e.label(".Lwo_extra")
    e("s_lshl_b32 s61, s67, 9")
    e("s_add_u32 s61, s61, s60")
    e("s_add_u32 s61, s61, 20480")
    e(f"v_lshlrev_b32 v{WG+4}, 3, {L}")
    e(f"buffer_store_dwordx2 {vr(WG+8,2)}, v{WG+4}, {WS}, s61 offen sc1")
    e.label(".Lwo_done")


def fo_word(e, d, t):
    e(f"s_and_b32 {d}, s4, 4")
    e(f"s_lshr_b32 {t}, s5, 3")
    e(f"s_add_u32 {d}, {d}, {t}")
    e(f"s_lshl_b32 {d}, {d}, 7")
    e(f"s_and_b32 {t}, s4, 3")
    e(f"s_lshl_b32 {t}, {t}, 3")
    e(f"s_add_u32 {d}, {d}, {t}")
    e(f"s_and_b32 {t}, s5, 4")
    e(f"s_add_u32 {d}, {d}, {t}")


def common_srds(e):
    if e.opt.get("wsoff"):
        e(f"s_add_u32 s8, s46, {e.opt['wsoff'] << 20}")
        e("s_addc_u32 s9, s47, 0")
        e(f"s_mov_b32 s10, {WS_BYTES - (e.opt['wsoff'] << 20)}")
        e("s_mov_b32 s11, 0x00020000")
    else:
        srd(e, 8, 46, WS_BYTES)
    srd(e, 12, 28, 0 if e.opt.get("g_nox") else 2048 * 1152)
    e("s_cmp_lt_u32 s4, 4")
    e("s_cselect_b32 s16, s30, s36")
    e("s_cselect_b32 s17, s31, s37")
    e(f"s_mov_b32 s18, {0 if e.opt.get('g_now') else 576*3456}")
    e("s_mov_b32 s19, 0x00020000")


def gen_consumer(e):
    opt = e.opt
    L = f"v{LANE}"
    e("s_and_b32 s50, s3, 1")
    e("s_lshr_b32 s51, s3, 1")
    w_prefetch_addr(e, 213)
    e(f"s_mov_b32 s71, {64*3456}")
    e("s_waitcnt lgkmcnt(0)")
    common_srds(e)

    xpf = opt.get("xpf", 0)
    if xpf:
        e("s_lshl_b32 s52, s5, 6")
        e("s_lshl_b32 s53, s3, 5")
        e("s_add_u32 s52, s52, s53")
        e(f"v_add_u32 v3, s52, {L}")
        e("v_mul_u32_u24 v3, 1152, v3")
        e(f"v_cmp_gt_u32 vcc, 32, {L}")
        e("s_cmp_lt_u32 s3, 2")
        e("s_cselect_b32 s20, s12, s16")
        e("v_cndmask_b32 v3, v5, v3, vcc")
        e("s_cselect_b32 s21, s13, s17")
        e("s_cselect_b32 s22, s14, s18")
        e("s_mov_b32 s23, 0x00020000")
        e(f"s_cselect_b32 s71, 128, s71")
        e("s_cselect_b64 vcc, -1, 0")
        e("v_cndmask_b32 v213, v213, v3, vcc")

    def prefetch(stage):
        if opt.get("nopf"):
            return
        if xpf:
            e(f"s_mul_i32 s53, s71, {stage}")
            e("buffer_load_dword v214, v213, s[20:23], s53 offen")
        else:
            e(f"s_mov_b32 s53, {stage*64*3456}")
            e("buffer_load_dword v214, v213, s[16:19], s53 offen")

    pfd = opt.get("pfd", 3)
    for st in range(opt.get("pf0", 0), pfd):
        prefetch(st)
    e("s_cmp_eq_u32 s3, 3")
    e("s_cbranch_scc0 .Lnoarrive")
    e("s_lshl_b32 s52, s4, 7")
    e("s_lshl_b32 s53, s5, 2")
    e("s_add_u32 s52, s52, s53")
    e(f"v_lshlrev_b32 v1, 10, {L}")
    e("v_add_u32 v1, s52, v1")
    e("s_lshl_b32 s52, s2, 2")
    e("s_add_u32 s52, s52, 3072")
    e("v_mov_b32 v3, s52")
    e("s_and_b32 s52, s5, 3")
    e("s_lshl_b32 s52, s52, 13")
    fo_word(e, "s53", "s54")
    e("s_add_u32 s52, s52, s53")
    e(f"v_lshlrev_b32 v2, 10, {L}")
    e("v_add_u32 v2, s52, v2")
    e(f"v_cmp_gt_u32 vcc, 3, {L}")
    e(f"v_mov_b32 v7, {OOB:#x}")
    e("v_mov_b32 v141, 0")
    e("v_cndmask_b32 v1, v2, v1, vcc")
    e(f"v_cmp_eq_u32 vcc, 3, {L}")
    e("s_nop 1")
    e("v_cndmask_b32 v1, v1, v3, vcc")
    e(f"v_cmp_gt_u32 vcc, 12, {L}")
    e("s_nop 1")
    e("v_cndmask_b32 v140, v7, v1, vcc")
    srd(e, 24, 44, 256)
    e(f"s_mov_b32 s52, {FLG}")
    e(f"buffer_store_dword v141, v140, {WS}, s52 offen sc1")
    e("s_and_b32 s52, s2, 3")
    e("s_lshl_b32 s52, s52, 6")
    e("v_mov_b32 v1, 1")
    e("s_waitcnt vmcnt(0)")
    e("s_mov_b64 exec, 1")
    e("buffer_atomic_add v1, v141, s[24:27], s52 offen")
    e("s_mov_b64 exec, -1")
    e.label(".Lnoarrive")
    e(f"v_and_b32 v1, 15, {L}")
    e(f"v_lshrrev_b32 v2, 4, {L}")
    e(f"v_bfe_u32 v3, {L}, 1, 3")
    e("v_xor_b32 v3, v2, v3")
    e("s_lshl_b32 s52, s51, 6")
    e("v_add_u32 v4, s52, v1")
    e("v_lshlrev_b32 v4, 7, v4")
    e("v_lshl_add_u32 v4, v3, 4, v4")
    e(f"v_add_u32 v207, {XB}, v4")
    e("v_xor_b32 v222, 64, v207")
    e("s_and_b32 s52, s4, 1")
    e("s_lshl_b32 s52, s52, 2")
    e("s_mul_i32 s53, s50, 27")
    e("s_add_u32 s52, s52, s53")
    e("s_mul_i32 s53, s50, 3")
    for p in range(3):
        e(f"s_add_u32 s59, s53, {p}")
        e("s_cmp_ge_u32 s59, 4")
        e("s_cselect_b32 s60, 4, 0")
        e("s_cmp_ge_u32 s59, 2")
        e("s_cselect_b32 s61, 6, 2")
        e("s_cmp_eq_u32 s49, 0")
        e("s_cselect_b32 s60, s60, s61")
        e(f"s_add_u32 s{62+p}, s52, {9*p}")
        e(f"s_add_u32 s{62+p}, s{62+p}, s60")
    e("v_lshrrev_b32 v3, 2, v1")
    e("v_lshl_add_u32 v4, v2, 3, v3")
    e("v_lshlrev_b32 v4, 9, v4")
    e(f"v_bfe_u32 v5, {L}, 3, 2")
    e("v_lshlrev_b32 v5, 3, v5")
    e("v_and_b32 v6, 4, v1")
    e("v_and_b32 v7, 3, v1")
    e("v_lshrrev_b32 v8, 1, v7")
    e("v_lshl_add_u32 v8, v7, 1, v8")
    e("v_add_u32 v8, v8, v5")
    for tile in range(7):
        if tile < 6:
            e(f"v_add_u32 v9, s{62 + tile//2}, v8")
            if tile % 2:
                e("v_add_u32 v9, 1, v9")
        else:
            e("v_mov_b32 v9, s64")
            e("v_mov_b32 v3, s63")
            e("v_cmp_eq_u32 vcc, 1, v7")
            e("s_nop 1")
            e("v_cndmask_b32 v9, v9, v3, vcc")
            e("v_mov_b32 v3, s62")
            e("v_cmp_eq_u32 vcc, 0, v7")
            e("s_nop 1")
            e("v_cndmask_b32 v9, v9, v3, vcc")
            e("v_add3_u32 v9, v9, v5, 4")
        e("v_and_b32 v9, 63, v9")
        e("v_xor_b32 v9, v9, v6")
        e(f"v_lshl_add_u32 v{200+tile}, v9, 3, v4")
        if tile == 6 and not opt.get("x_dup"):
            e("v_cmp_eq_u32 vcc, 3, v7")
            e("v_mov_b32 v3, 0x40000")
            e("s_nop 0")
            e(f"v_cndmask_b32 v{200+tile}, v{200+tile}, v3, vcc")
        e(f"v_add_u32 v{215+tile}, {2*WSLOT}, v{200+tile}")
    e("v_lshrrev_b32 v3, 1, v2")
    e(f"s_mov_b32 s52, {HS}")
    e("v_mul_lo_u32 v3, v3, s52")
    e("v_and_b32 v4, 1, v2")
    e("v_lshl_add_u32 v5, v4, 9, v3")
    e("v_lshl_add_u32 v208, v1, 4, v5")
    e("v_lshl_add_u32 v5, v4, 4, v3")
    e("v_lshl_add_u32 v209, v1, 5, v5")
    e("s_mul_i32 s52, s49, 12")
    e("s_mul_i32 s53, s50, 6")
    e("s_add_u32 s54, s52, s53")
    e("s_lshl_b32 s55, s48, 1")
    e("s_add_u32 s55, s55, s51")
    e("s_lshl_b32 s56, s4, 3")
    e("v_lshl_add_u32 v3, v2, 1, s54")
    e("v_lshrrev_b32 v4, 3, v3")
    e("v_and_b32 v3, 7, v3")
    e("v_add_u32 v3, s56, v3")
    e(f"s_mov_b32 s52, {HS}")
    e("v_mul_lo_u32 v3, v3, s52")
    e(f"s_mul_i32 s57, s55, {QCH}")
    e(f"s_add_u32 s57, s57, {QOFF}")
    e(f"s_mul_i32 s58, s55, {CH}")
    e("v_lshrrev_b32 v5, 3, v1")
    e("v_mul_u32_u24 v5, 512, v5")
    e("v_add_u32 v5, s58, v5")
    e("v_mov_b32 v6, s57")
    e("v_cmp_eq_u32 vcc, 0, v4")
    e(f"v_mov_b32 v7, {f32(QSCALE)}")
    e("s_nop 0")
    e("v_cndmask_b32 v5, v5, v6, vcc")
    e("v_cndmask_b32 v212, 1.0, v7, vcc")
    e("v_add_u32 v5, v5, v3")
    e("v_lshl_add_u32 v5, v1, 4, v5")
    e("v_add_u32 v210, 2048, v5")
    e("v_lshlrev_b32 v6, 5, v1")
    e("v_add3_u32 v6, v6, v3, s58")
    e(f"v_add_u32 v211, {VX}, v6")
    e(f"v_mov_b32 v7, {OOB:#x}")
    e("v_cmp_eq_u32 vcc, 2, v4")
    e("s_nop 1")
    e("v_cndmask_b32 v210, v210, v7, vcc")
    e("v_cndmask_b32 v211, v7, v211, vcc")
    e("v_cmp_eq_u32 vcc, 3, v2")
    e("s_nop 1")
    e("v_cndmask_b32 v210, v210, v7, vcc")
    e("v_cndmask_b32 v211, v211, v7, vcc")

    F = [112, 156]

    def reads(stage, ks, fb):
        slot = stage % 3
        xr = [f"ds_read_b128 {vr(fb+4*tt,4)}, v{222 if ks else 207} offset:{slot*XSLOT + tt*2048}" for tt in range(4)]
        wr_ = []
        for tile in range(7):
            for r in range(2):
                a = (215 if slot == 2 else 200) + tile
                off = (WSLOT if slot == 1 else 0) + ks * 16384 + r * 2048
                wr_.append(f"ds_read_b64_tr_b16 {vr(fb+16+4*tile+2*r,2)}, v{a} offset:{off}")
        return xr[0:2] + wr_[0:2] + xr[2:4] + wr_[2:]

    def mfmas(fb, first):
        out = []
        for tile in range(7):
            for tt in range(4):
                acc = vr((tt * 7 + tile) * 4, 4)
                c = "0" if first else acc
                out.append(f"v_mfma_f32_16x16x32_bf16 {acc}, {vr(fb+16+4*tile,4)}, {vr(fb+4*tt,4)}, {c}")
        return out

    e("s_barrier")
    e.stamp(1)
    for r in reads(0, 0, F[0]):
        e(r)
    e("s_waitcnt lgkmcnt(0)")
    def mix(m, rd):
        for i, x in enumerate(m):
            e(x)
            if i < len(rd):
                e(rd[i])

    if pfd <= 8:
        prefetch(pfd)
    for ph in range(15):
        s, ks = divmod(ph, 2)
        mix(mfmas(F[ks], ph == 0), reads(s, 1, F[1]) if ks == 0 else reads(s + 1, 0, F[0]))
        e("s_waitcnt lgkmcnt(0)")
        if ks == 0 and s < 7:
            e("s_barrier")
            if s + 1 + pfd <= 8:
                prefetch(s + 1 + pfd)
    m = mfmas(F[1], False)
    mix(m[:14], [])
    e("s_barrier")
    mix(m[14:], reads(8, 0, F[0])[:14])
    for r in reads(8, 0, F[0])[14:]:
        e(r)
    e("s_waitcnt lgkmcnt(0)")
    m = mfmas(F[0], False)
    mix(m[:10], [])
    e("s_barrier")
    mix(m[10:], reads(8, 1, F[1]))
    e("s_waitcnt lgkmcnt(0)")
    last = mfmas(F[1], False)
    mix(last[:8], [])
    e.stamp(2)
    for p in range(3):
        e(f"s_add_u32 s52, s54, {2*p}")
        e("s_lshr_b32 s53, s52, 3")
        e("s_and_b32 s52, s52, 7")
        e("s_add_u32 s52, s52, s56")
        e(f"s_mul_i32 s52, s52, {HS}")
        e("s_cmp_eq_u32 s53, 0")
        e("s_cselect_b32 s59, s57, s58")
        e("s_add_u32 s60, s52, s59")
        e("s_cmp_eq_u32 s53, 2")
        e(f"s_cbranch_scc1 .Lqkv_ep_v{p}")
        e("s_cmp_eq_u32 s53, 0")
        e(f"s_cbranch_scc0 .Lqkv_ep_k{p}")
        e(f"s_mov_b32 s59, {f32(QSCALE)}")
        for kind in "qkv":
            if kind != "q":
                e.label(f".Lqkv_ep_{kind}{p}")
            if kind == "v":
                e(f"s_add_u32 s60, s60, {VM}")
            todo = list(last[8 + 8*p: 16 + 8*p])
            for tt in range(4):
                r = (tt * 7 + 2 * p) * 4
                d = 112 + (p % 2) * 16 + tt * 4 if p < 2 else 144 + (tt % 2) * 4 + (tt // 2) * 80
                ops = []
                if kind == "q":
                    ops += [f"v_mul_f32 v{r+j}, s59, v{r+j}" for j in range(8)]
                ops += [f"v_cvt_pk_bf16_f32 v{d+j}, v{r+2*j}, v{r+2*j+1}" for j in range(4)]
                for k, x in enumerate(ops):
                    if k % 2 == 0 and todo:
                        e(todo.pop(0))
                    e(x)
                if kind == "v":
                    e(f"buffer_store_dwordx4 {vr(d,4)}, v209, {WS}, s60 offen offset:{tt*512}")
                else:
                    e(f"buffer_store_dwordx4 {vr(d,4)}, v208, {WS}, s60 offen offset:{(tt//2)*1024 + (tt%2)*256}")
            assert not todo
            if kind != "v":
                e(f"s_branch .Lqkv_ep_n{p}")
        e.label(f".Lqkv_ep_n{p}")
    X = 160
    for tt in range(4):
        r = (tt * 7 + 6) * 4
        for j in range(4):
            e(f"v_mul_f32 v{r+j}, v212, v{r+j}")
        e(f"v_cvt_pk_bf16_f32 v{X+tt}, v{r}, v{r+1}")
        e(f"v_cvt_pk_bf16_f32 v{X+4+tt}, v{r+2}, v{r+3}")
    e(f"s_mov_b32 s59, {HS}")
    e("s_cmp_ge_u32 s54, 16")
    e("s_cbranch_scc1 .Lqkv_ex_v")
    e(f"buffer_store_dwordx4 {vr(X,4)}, v210, {WS}, 0 offen")
    e(f"buffer_store_dwordx4 {vr(X+4,4)}, v210, {WS}, s59 offen")
    e("s_cmp_ge_u32 s54, 12")
    e("s_cbranch_scc0 .Lp1_join")
    e.label(".Lqkv_ex_v")
    for k in range(8):
        e(f"v_mov_b32 v{X+8+2*k}, v{X+k}")
        e(f"v_mov_b32 v{X+9+2*k}, 0x3f80")
    for k in range(4):
        e(f"buffer_store_dwordx4 {vr(X+8+4*k,4)}, v211, {WS}, {'0' if k < 2 else 's59'} offen offset:{(k%2)*16}")
    e.label(".Lp1_join")
    e("s_waitcnt vmcnt(0)")
    e("s_barrier")
    e.stamp(3)
    e.label(".Lp1_done")


X_, Y_ = 0, 32
OA, OB = 64, 80
Q1A, Q1B, Q2A, Q2B = 96, 100, 104, 106
K1LO, K1HI, K2R = 108, 112, 116
IDX, AK1, AK2, AK20 = 118, 119, 120, 121
AV, AVI = 140, 144
VF = 124
WOM, WOE, GT = 152, 232, 242


def rdV(j, off):
    return [f"ds_read_b64_tr_b16 {vr(VF+4*j+2*r,2)}, v{AV+j} offset:{off + r*128}" for r in range(2)]


def pv(o, j, src):
    return f"v_smfmac_f32_32x32x32_bf16 {vr(o,16)}, {vr(VF+4*j,4)}, {vr(src+8*j,8)}, v{IDX}"


def dma_round(e, step=8192, off=0):
    if step:
        e(f"s_add_u32 m0, m0, {step}")
        e(f"s_add_u32 s53, s53, {step}")
    e(f"buffer_load_dwordx4 v{AK1}, {WS}, s53 offen offset:{off} sc1 lds")


def attn_unit(e, which, ci, first=False, side=()):
    if which == "A":
        cur, oth, o, op, q1, q2 = X_, Y_, OA, OB, Q1B, Q2B
    else:
        cur, oth, o, op, q1, q2 = Y_, X_, OB, OA, Q1A, Q2A
    c0, c1 = ci * CH, (ci + 1) * CH
    A = which == "A"
    wfirst = e.opt.get("wfirst", 1)

    def ex(a, b):
        for i in range(a, b + 1):
            e(f"v_exp_f32 v{cur+i}, v{cur+i}")

    def slot(rd, wait=None):
        if e.opt.get("x_halfv") and rd and "tr_b16" in rd and "offset:%d" % (c0 + 128) + "$" in rd + "$":
            rd = None
        if e.opt.get("x_halfv") and rd and "tr_b16" in rd and "offset:%d" % (c1 + 128) + "$" in rd + "$":
            rd = None
        if e.opt.get("x_nolds"):
            rd = None
        if wait is not None and wfirst:
            e(f"s_waitcnt lgkmcnt({wait})")
        if rd:
            e(rd)
        if wait is not None and not wfirst:
            e(f"s_waitcnt lgkmcnt({wait + 1})")

    side = list(side)

    def job():
        if side:
            side.pop(0)()

    ex(0, 1)
    if not first:
        e(pv(op, 3, oth))
    if A:
        slot(rdV(2, c0)[1], 1)
    else:
        job()
        job()
    ex(2, 4)
    xv = e.opt.get("xv", 0)
    if xv == 1:
        e(f"v_mfma_f32_32x32x8_bf16 {vr(oth,16)}, {vr(K2R,2)}, {vr(q2,2)}, 0")
        ex(5, 7)
        e(f"v_mfma_f32_32x32x8_bf16 {vr(oth+16,16)}, {vr(K2R,2)}, {vr(q2,2)}, 0")
    elif xv == 2:
        e(f"v_mfma_f32_16x16x4_4b_bf16 {vr(oth,16)}, {vr(K2R,2)}, {vr(q2,2)}, 0")
        ex(5, 7)
        e(f"v_mfma_f32_16x16x4_4b_bf16 {vr(oth+16,16)}, {vr(K2R,2)}, {vr(q2,2)}, 0")
    else:
        e(f"v_mfma_f32_32x32x4_2b_bf16 {vr(oth,32)}, {vr(K2R,2)}, {vr(q2,2)}, 0")
    pr = e.opt.get("prio", 8)
    if pr:
        u = (2 * ci + (0 if A else 1)) % (2 * pr)
        for at, lvl in ((0, 2), (2 * pr - e.opt.get("priol", 2), 0)):
            if u == at:
                lab = e.uid("pr")
                e("s_cmp_lt_u32 s3, 4")
                e(f"s_cbranch_scc0 {lab}")
                e(f"s_setprio {lvl}")
                e.label(lab)
    jp = e.opt.get("jobpos", 0)
    if jp == 0:
        job()
    ex(8 if xv in (1, 2) else 5, 12)
    e(pv(o, 0, cur))
    if jp == 2:
        job()
    slot(f"ds_read_b32 v{K2R}, v{AK2} offset:{c1}" if A else rdV(0, c1)[0])
    if jp == 1 or A:
        job()
    ex(13, 17)
    e(pv(o, 1, cur))
    slot(rdV(3, c0)[0] if A else rdV(0, c1)[1], 1)
    ex(18, 20)
    e(f"v_mfma_f32_32x32x16_bf16 {vr(oth,16)}, {vr(K1LO,4)}, {vr(q1,4)}, {vr(oth,16)}")
    slot(rdV(3, c0)[1] if A else rdV(1, c1)[0])
    ex(21, 23)
    e(f"v_mfma_f32_32x32x16_bf16 {vr(oth+16,16)}, {vr(K1HI,4)}, {vr(q1,4)}, {vr(oth+16,16)}")
    slot(f"ds_read_b128 {vr(K1LO,4)}, v{AK1} offset:{c1}" if A else rdV(1, c1)[1])
    ex(24, 26)
    e(pv(o, 2, cur))
    if A:
        slot(f"ds_read_b128 {vr(K1HI,4)}, v{AK1} offset:{c1 + 1024}", 1)
    else:
        slot(rdV(2, c1)[0])
    ex(27, 29)
    xm = e.opt.get("x_mf", 0)
    if xm == 1:
        e(f"v_smfmac_f32_32x32x32_bf16 {vr(152,16)}, {vr(VF+4,4)}, {vr(cur+8,8)}, v{IDX}")
    if xm == 2:
        e(f"v_mfma_f32_32x32x16_bf16 {vr(152,16)}, {vr(K1HI,4)}, {vr(q1,4)}, {vr(168,16)}")
    if xm == 3:
        e(f"v_mfma_f32_32x32x16_bf16 {vr(152,16)}, {vr(K1HI,4)}, {vr(q1,4)}, 0")
    if xm == 4:
        e(f"v_mfma_f32_32x32x8_bf16 {vr(152,16)}, {vr(K2R,2)}, {vr(q2,2)}, 0")
    if xm == 5:
        e(f"v_mfma_f32_16x16x32_bf16 {vr(152,4)}, {vr(K1HI,4)}, {vr(q1,4)}, 0")
        e(f"v_mfma_f32_16x16x32_bf16 {vr(156,4)}, {vr(K1LO,4)}, {vr(q1,4)}, 0")
    if xm == 6:
        e(f"v_mfma_f32_16x16x4_4b_bf16 {vr(152,16)}, {vr(K2R,2)}, {vr(q2,2)}, 0")
    if xm == 7:
        e(f"v_mfma_f32_32x32x16_bf16 {vr(152,16)}, {vr(184,4)}, {vr(184,4)}, 0")
    if xm in (8, 9):
        if xm == 8:
            e(f"v_mfma_f32_32x32x16_bf16 {vr(152,16)}, {vr(VF+4,4)}, {vr(184,4)}, {vr(152,16)}")
        for k in range(4):
            e(f"v_cvt_pk_bf16_f32 v{184+k}, v{cur+8+2*k}, v{cur+9+2*k}")
    if xm == 10:
        e(f"v_mfma_f32_32x32x4_2b_bf16 {vr(152,32)}, {vr(K2R,2)}, {vr(q2,2)}, 0")
    for _ in range(e.opt.get("x_vnop", 0)):
        e("v_nop")
    for k in range(e.opt.get("x_vexp", 0)):
        e(f"v_exp_f32 v{T1}, v{cur+k}")
    ex(30, 31)
    assert not side


def max_tree(e, dst, src, n, init):
    i = 0
    if not init:
        e(f"v_max3_f32 v{dst}, v{src}, v{src+1}, v{src+2}")
        i = 3
    while i + 1 < n:
        e(f"v_max3_f32 v{dst}, v{src+i}, v{src+i+1}, v{dst}")
        i += 2
    if i < n:
        e(f"v_max_f32 v{dst}, v{src+i}, v{dst}")


def set_m(e, pairs, exact=True):
    for m, t, q in pairs:
        e(f"v_mov_b32 v{t}, v{m}")
    e("s_nop 1")
    for m, t, q in pairs:
        e(f"v_permlane32_swap_b32 v{m}, v{t}")
    e("s_nop 1")
    for m, t, q in pairs:
        e(f"v_max_f32 v{m}, v{m}, v{t}")
    if not exact:
        for m, t, q in pairs:
            e(f"v_cvt_pk_bf16_f32 v{q}, -v{m}, 0")
        return
    for m, t, q in pairs:
        e(f"v_cvt_pk_bf16_f32 v{t}, v{m}, v{m}")
    for m, t, q in pairs:
        e(f"v_lshlrev_b32 v{t}, 16, v{t}")
    for m, t, q in pairs:
        e(f"v_sub_f32 v{m}, v{m}, v{t}")
    for m, t, q in pairs:
        e(f"v_cvt_pk_bf16_f32 v{q}, -v{t}, -v{m}")


def attn_addr_init(e):
    e(f"v_lshlrev_b32 v{AK1}, 4, v{LANE}")
    e(f"v_mov_b32 v{AK2}, v{AK20}")
    for j in range(4):
        e(f"v_mov_b32 v{AV+j}, v{AVI+j}")


def attn_setup(e):
    L = f"v{LANE}"
    e("s_lshl_b32 s48, s4, 3")
    e("s_lshr_b32 s49, s5, 2")
    e("s_add_u32 s48, s48, s49")
    e("s_and_b32 s49, s5, 3")
    e("s_lshl_b32 s49, s49, 3")
    e("s_add_u32 s49, s49, s3")
    e(f"s_mul_i32 s50, s48, {HS}")
    e(f"s_mul_i32 s51, s49, {QCH}")
    e("s_add_u32 s51, s51, s50")
    e(f"s_add_u32 s51, s51, {QOFF}")
    e("s_lshl_b32 s52, s3, 10")
    e("s_add_u32 s53, s50, s52")
    e("s_mov_b32 m0, s52")
    e(f"v_and_b32 v2, 15, {L}")
    e(f"v_lshrrev_b32 v3, 4, {L}")
    e("v_lshrrev_b32 v4, 1, v3")
    e("v_lshlrev_b32 v4, 8, v4")
    e("v_lshrrev_b32 v5, 2, v2")
    e("v_lshl_add_u32 v4, v5, 5, v4")
    e("v_and_b32 v6, 1, v2")
    e("v_bfe_u32 v7, v2, 1, 1")
    e("v_lshl_add_u32 v6, v6, 1, v7")
    e("v_lshlrev_b32 v6, 3, v6")
    e(f"v_add_u32 v6, {VM}, v6")
    e("v_and_b32 v9, 3, v2")
    e("v_cmp_eq_u32 vcc, 0, v9")
    e("v_mov_b32 v9, 0x40000")
    e(f"v_mov_b32 v7, {VX}")
    e("v_and_b32 v8, 1, v3")
    e("v_cndmask_b32 v7, v9, v7, vcc")
    e("v_cmp_eq_u32 vcc, 0, v8")
    e("v_mov_b32 v9, 512")
    e("v_and_b32 v1, 7, v2")
    e("v_cndmask_b32 v6, v7, v6, vcc")
    e("v_cndmask_b32 v9, 8, v9, vcc")
    e(f"v_add_u32 v{AVI}, v4, v6")
    for j in range(1, 4):
        e(f"v_add_u32 v{AVI+j}, v{AVI+j-1}, v9")
    e("v_lshlrev_b32 v1, 4, v1")
    e("v_lshl_add_u32 v1, v3, 2, v1")
    e("v_lshrrev_b32 v5, 3, v2")
    e("v_mul_u32_u24 v5, 640, v5")
    e("v_add_u32 v1, 2048, v1")
    e(f"v_add_u32 v{AK20}, v1, v5")
    e("v_lshlrev_b32 v1, 2, v8")
    e(f"v_lshl_add_u32 v{T0}, v2, 4, v1")
    attn_addr_init(e)
    e(f"v_mov_b32 v{IDX}, 0xdddddddd")
    e(f"v_mov_b32 v{K2R+1}, 0x3f803f80")
    for i in range(32):
        e(f"v_mov_b32 v{OA+i}, 0")
    e("s_mov_b32 s55, 0")
    if e.opt.get("x_mf") == 7:
        for i in range(4):
            e(f"v_mov_b32 v{184+i}, 0")
    e("s_setprio 1")


def gen_attn(e):
    opt = e.opt
    L = f"v{LANE}"
    e("s_barrier")
    e.stamp(4)
    if opt.get("probe"):
        e(f"buffer_load_dwordx4 {vr(Q1A,4)}, v{AK1}, {WS}, s51 offen sc1")
        e("s_waitcnt vmcnt(0)")
        e.stamp(6)
        e(f"buffer_load_dword v{Q2A}, v{T0}, {WS}, s51 offen offset:2048 sc1")
        e("s_waitcnt vmcnt(0)")
        e.stamp(7)
        e(f"buffer_load_dwordx4 v{AK1}, {WS}, s53 offen sc1 lds")
        e("s_waitcnt vmcnt(0)")
        e.stamp(8)
        e(f"buffer_load_dwordx4 {vr(Q1B,4)}, v{AK1}, {WS}, s51 offen offset:1024 sc1")
        e("s_waitcnt vmcnt(0)")
        e.stamp(9)
        e.opt = dict(opt, stamp=0)
        e.final = opt["stamp"]
    e(f"buffer_load_dwordx4 {vr(Q1A,4)}, v{AK1}, {WS}, s51 offen sc1")
    e(f"buffer_load_dwordx4 v{AK1}, {WS}, s53 offen sc1 lds")
    e(f"buffer_load_dwordx4 {vr(Q1B,4)}, v{AK1}, {WS}, s51 offen offset:1024 sc1")
    dma_round(e)
    e(f"buffer_load_dword v{Q2A}, v{T0}, {WS}, s51 offen offset:2048 sc1")
    e(f"buffer_load_dword v{Q2B}, v{T0}, {WS}, s51 offen offset:2056 sc1")
    e("s_waitcnt vmcnt(0)")
    e("s_barrier")
    e.stamp(5)
    e(f"ds_read_b128 {vr(K1LO,4)}, v{AK1}")
    e(f"ds_read_b128 {vr(K1HI,4)}, v{AK1} offset:1024")
    e(f"ds_read_b32 v{K2R}, v{AK2}")
    for j in range(3):
        for r in rdV(j, 0):
            e(r)
    e("s_waitcnt lgkmcnt(8)")
    e(f"v_mfma_f32_32x32x16_bf16 {vr(X_,16)}, {vr(K1LO,4)}, {vr(Q1A,4)}, 0")
    e(f"v_mfma_f32_32x32x16_bf16 {vr(Y_,16)}, {vr(K1LO,4)}, {vr(Q1B,4)}, 0")
    e("s_waitcnt lgkmcnt(7)")
    e(f"v_mfma_f32_32x32x16_bf16 {vr(X_+16,16)}, {vr(K1HI,4)}, {vr(Q1A,4)}, 0")
    dma_round(e)
    e("s_mul_i32 s59, s3, 3072")
    e("s_add_u32 s59, s59, 8192")
    e("s_add_u32 m0, m0, s59")
    e("s_add_u32 s53, s53, s59")
    for k in range(2):
        dma_round(e, 0, 1024 * k)
    e("s_nop 0")
    if opt.get("x_nom"):
        e(f"v_mov_b32 v{Q2A+1}, 0")
        e(f"v_mov_b32 v{Q2B+1}, 0")
    else:
        nm = opt.get("mregs", 16)
        max_tree(e, Y_ + 16, X_, nm, False)
        max_tree(e, Y_ + 17, Y_, nm, False)
        set_m(e, [(Y_ + 16, Y_ + 18, Q2A + 1), (Y_ + 17, Y_ + 19, Q2B + 1)], exact=False)
    e("s_waitcnt lgkmcnt(0)")
    e("s_nop 0")
    e(f"v_mfma_f32_32x32x4_2b_bf16 {vr(X_,32)}, {vr(K2R,2)}, {vr(Q2A,2)}, {vr(X_,32)}")
    e("s_lshr_b32 s56, s5, 2")
    e("s_lshl_b32 s56, s56, 3")
    e("s_add_u32 s56, s56, s3")
    e("s_lshl_b32 s57, s56, 4")
    e("s_and_b32 s59, s5, 3")
    e("s_lshl_b32 s59, s59, 8")
    e("s_lshl_b32 s60, s4, 2")
    e("s_add_u32 s59, s59, s60")
    e("s_sub_u32 s59, s59, 128")
    e(f"v_lshl_add_u32 v246, {L}, 2, s57")
    e(f"v_lshl_add_u32 v247, {L}, 5, s59")
    e(f"v_cmp_gt_u32 vcc, 4, {L}")
    e(f"s_mov_b32 s57, {FW}")
    e(f"v_and_b32 v247, 0x3ff, v247")
    e("v_cndmask_b32 v246, v247, v246, vcc")
    e(f"s_mul_i32 s56, s56, {WSET}")
    e(f"s_add_u32 s24, s56, {WOP}")
    e("s_and_b32 s58, s3, 3" if opt.get("rrole", 2) else "s_lshr_b32 s58, s3, 1")
    e("s_lshl_b32 s58, s58, 6")
    e("s_lshl_b32 s59, s4, 10")
    e("s_add_u32 s58, s58, s59")
    e("s_and_b32 s59, s5, 3")
    e("s_lshl_b32 s59, s59, 8")
    e("s_add_u32 s58, s58, s59")
    e(f"s_add_u32 s25, s58, {GATE}")
    e(f"v_lshlrev_b32 v{T0}, 2, {L}")
    e(f"v_lshlrev_b32 v148, 4, {L}")
    e(f"v_lshlrev_b32 v149, 3, {L}")
    e(f"v_and_b32 v150, 60, v{T0}")
    e("v_add_u32 v151, 4096, v148")
    e(f"v_and_b32 v{T1}, 8, {L}")
    e(f"v_lshlrev_b32 v{T1}, 28, v{T1}")
    e(f"v_or_b32 v151, v151, v{T1}")
    wo_store(e)
    jobs = [(lambda k=k: dma_round(e, 32768 if k % 4 == 0 else 0, 1024 * (k % 4))) for k in range(2, 16)]
    if opt.get("x_nodma"):
        jobs = []
    for ci in range(8):
        if ci == 2:
            if not opt.get("x_nob1"):
                e("s_waitcnt vmcnt(6)")
                e("s_barrier")
        if ci == 7:
            if not opt.get("x_nob2"):
                e("s_waitcnt vmcnt(0)")
                e("s_barrier")
            e("s_cmp_eq_u32 s3, 4")
            e("s_cbranch_scc0 .Lnofw")
            e("s_lshl_b32 s59, s2, 2")
            e(f"s_add_u32 s59, s59, {FW}")
            e("s_mov_b64 exec, 1")
            e(f"buffer_store_dword v{IDX}, v{T0}, {WS}, s59 offen sc1")
            e("s_mov_b64 exec, -1")
            e.label(".Lnofw")
        for w in "AB":
            n = 1 if w == "A" else 3
            side, jobs = jobs[:n], jobs[n:]
            attn_unit(e, w, ci, first=(ci == 0 and w == "A"), side=side)
    for a in (AK1, AK2, AV, AV + 1, AV + 2, AV + 3):
        e(f"v_add_u32 v{a}, {8*CH}, v{a}")
    e.stamp(6)
    e("s_lshl_b32 s21, s49, 10")
    fo_word(e, "s22", "s23")
    e("s_add_u32 s21, s21, s22")
    e(f"s_add_u32 s21, s21, {FO}")
    e("s_lshl_b32 s50, s4, 2")
    e("s_and_b32 s51, s5, 3")
    e("s_add_u32 s50, s50, s51")
    e("s_lshr_b32 s51, s5, 2")
    e("s_lshl_b32 s20, s50, 10")
    e("s_lshl_b32 s22, s3, 7")
    e("s_add_u32 s20, s20, s22")
    e(f"s_add_u32 s20, s20, {FO}")
    e(f"v_and_b32 v250, 7, {L}")
    e("v_lshlrev_b32 v250, 2, v250")
    if opt.get("wb"):
        e("s_cmp_eq_u32 s3, 7")
        e("s_cbranch_scc0 .Lnowb")
        if opt["wb"] == 2:
            e("s_cmp_eq_u32 s5, 0")
            e("s_cbranch_scc0 .Lnowb")
        e("buffer_wbl2 sc1")
        e.label(".Lnowb")
    jobs = []

    def wo_load(k):
        if k < 20:
            r, tile = divmod(k, 5)
            if tile == 0:
                e(f"s_add_u32 s59, s4, {r + 1}")
                e("s_and_b32 s59, s59, 3")
                e("s_mul_i32 s59, s59, 5120")
                e("s_add_u32 s26, s59, s24")
            a_, off = (148, tile * 1024) if tile < 4 else (151, 0)
            e(f"buffer_load_dwordx4 {vr(WOM+4*k,4)}, v{a_}, {WS}, s26 offen offset:{off} sc1")
        elif k < 25:
            if k == 20:
                e("s_add_u32 s26, s24, 20480")
            e(f"buffer_load_dwordx2 {vr(WOE+2*(k-20),2)}, v149, {WS}, s26 offen offset:{(k-20)*512} sc1")
        else:
            if k == 26:
                e("s_add_u32 s26, s25, 8192")
            e(f"buffer_load_dword v{GT+k-25}, v150, {WS}, {'s25' if k == 25 else 's26'} offen sc1")

    jobs = [(lambda k=k: wo_load(k)) for k in range(27)]
    na, nb = opt.get("wo_a", 27), opt.get("wo_b", 27)
    e.late = (jobs[na:nb], jobs[nb:])
    jobs = jobs[:na]
    for ci in range(8):
        if ci == 1:
            e(f"buffer_load_dword v{T1}, v246, {WS}, s57 offen sc1")
        if ci == 2:
            poll(e, T1, 246, WS, "s57", f"v_cmp_ne_u32 vcc, 0, v{T1}", 0xfff, first_loaded=True)
        for w in "AB":
            n = 0 if ci < 2 else 2 if w == "A" else 3
            side, jobs = jobs[:n], jobs[n:]
            attn_unit(e, w, ci, side=side)
    assert not jobs
    for a in (AK1, AK2, AV, AV + 1, AV + 2, AV + 3):
        e(f"v_add_u32 v{a}, {8*CH}, v{a}")
    e("s_mov_b32 s54, 2")
    if opt.get("solo"):
        e.stamp(12)
        e("s_barrier")
        e.stamp(6)
        e("s_mov_b32 s55, 1")
        if opt["solo"] == 1:
            e("s_cmp_ge_u32 s3, 4")
            e("s_cbranch_scc1 .Lattn_done")
    e.raw(".p2align 6")
    e.label(".Lattn_loop")
    for ci in range(8):
        attn_unit(e, "A", ci)
        attn_unit(e, "B", ci)
    for a in (AK1, AK2, AV, AV + 1, AV + 2, AV + 3):
        e(f"v_add_u32 v{a}, {8*CH}, v{a}")
    e("s_sub_u32 s54, s54, 1")
    e("s_cmp_lg_u32 s54, 0")
    e("s_cbranch_scc1 .Lattn_loop")
    e.label(".Lattn_done")
    e(pv(OB, 3, Y_))
    e("s_waitcnt lgkmcnt(0)")
    e.stamp(7)
    e(f"v_mov_b32 v4, v{OA+10}")
    e(f"v_lshlrev_b32 v2, 4, {L}")
    e(f"v_lshlrev_b32 v3, 2, {L}")
    e(f"v_permlane32_swap_b32 v{OA+10}, v4")
    e("s_lshl_b32 s56, s48, 16")
    e("s_lshl_b32 s57, s49, 11")
    e("s_add_u32 s56, s56, s57")
    e(f"s_add_u32 s56, s56, {O1}")
    e(f"v_rcp_f32 v0, v{OA+10}")
    e("s_lshl_b32 s57, s48, 13")
    e("s_lshl_b32 s58, s49, 8")
    e("s_add_u32 s57, s57, s58")
    e(f"s_add_u32 s57, s57, {O2}")
    e(f"v_mov_b32 v4, v{OB+10}")
    for i in range(10):
        e(f"v_mul_f32 v{OA+i}, v0, v{OA+i}")
    e(f"v_permlane32_swap_b32 v{OB+10}, v4")
    for j in range(5):
        e(f"v_cvt_pk_bf16_f32 v{8+j}, v{OA+2*j}, v{OA+2*j+1}")
    e(f"v_rcp_f32 v1, v{OB+10}")
    e(f"buffer_store_dwordx4 v[8:11], v2, {WS}, s56 offen sc1")
    for i in range(10):
        e(f"v_mul_f32 v{OB+i}, v1, v{OB+i}")
    for j in range(5):
        e(f"v_cvt_pk_bf16_f32 v{16+j}, v{OB+2*j}, v{OB+2*j+1}")
    e(f"buffer_store_dwordx4 v[16:19], v2, {WS}, s56 offen offset:1024 sc1")
    e("v_mov_b32 v0, 0")
    e("v_permlane32_swap_b32 v12, v20")
    e("v_mov_b32 v1, 0")
    e(f"buffer_store_dword v12, v3, {WS}, s57 offen sc1")
    for i in range(10):
        e(f"v_fmac_f32 v0, 0, v{OA+i}")
        e(f"v_fmac_f32 v1, 0, v{OB+i}")
    e(f"v_add_f32 v0, v0, v{OA+10}")
    e(f"v_add_f32 v1, v1, v{OB+10}")
    e(f"s_mov_b32 s56, {f32(2.0**60)}")
    e(f"s_mov_b32 s57, {f32(2.0**-60)}")
    e("v_cmp_nge_f32 s[58:59], s56, v0")
    e("v_cmp_nle_f32 s[60:61], s57, v0")
    e("v_cmp_nge_f32 s[62:63], s56, v1")
    e("v_cmp_nle_f32 s[64:65], s57, v1")
    if opt.get("force_fallback"):
        e("s_mov_b64 s[58:59], -1")
    e("s_or_b64 s[58:59], s[58:59], s[60:61]")
    e("s_or_b64 s[62:63], s[62:63], s[64:65]")
    e("s_or_b64 s[58:59], s[58:59], s[62:63]")
    e("s_cselect_b32 s56, 1, 0")
    e("s_cmp_gt_u32 s56, s55")
    if not opt.get("nofb"):
        e("s_cbranch_scc1 .Lattn_fallback")


def gen_fallback(e):
    e.label(".Lattn_fallback")
    e("s_waitcnt vmcnt(0)")
    e("s_mov_b32 s55, 1")
    attn_addr_init(e)
    MA, MB = OA, OA + 1
    e(f"v_mov_b32 v{MA}, 0xff800000")
    e(f"v_mov_b32 v{MB}, 0xff800000")
    e(f"v_mov_b32 v{Q2A+1}, 0")
    e(f"v_mov_b32 v{Q2B+1}, 0")
    e("s_mov_b32 s54, 32")
    e.label(".Lattn_maxloop")
    e(f"ds_read_b128 {vr(K1LO,4)}, v{AK1}")
    e(f"ds_read_b128 {vr(K1HI,4)}, v{AK1} offset:1024")
    e(f"ds_read_b32 v{K2R}, v{AK2}")
    e("s_waitcnt lgkmcnt(0)")
    for buf, q1 in ((X_, Q1A), (Y_, Q1B)):
        e(f"v_mfma_f32_32x32x16_bf16 {vr(buf,16)}, {vr(K1LO,4)}, {vr(q1,4)}, 0")
        e(f"v_mfma_f32_32x32x16_bf16 {vr(buf+16,16)}, {vr(K1HI,4)}, {vr(q1,4)}, 0")
    e("s_nop 10")
    e(f"v_mfma_f32_32x32x4_2b_bf16 {vr(X_,32)}, {vr(K2R,2)}, {vr(Q2A,2)}, {vr(X_,32)}")
    e(f"v_mfma_f32_32x32x4_2b_bf16 {vr(Y_,32)}, {vr(K2R,2)}, {vr(Q2B,2)}, {vr(Y_,32)}")
    e("s_nop 15")
    e("s_nop 4")
    max_tree(e, MA, X_, 32, True)
    max_tree(e, MB, Y_, 32, True)
    e(f"v_add_u32 v{AK1}, {CH}, v{AK1}")
    e(f"v_add_u32 v{AK2}, {CH}, v{AK2}")
    e("s_sub_u32 s54, s54, 1")
    e("s_cmp_lg_u32 s54, 0")
    e("s_cbranch_scc1 .Lattn_maxloop")
    set_m(e, [(MA, OA + 2, Q2A + 1), (MB, OA + 3, Q2B + 1)])
    attn_addr_init(e)
    e(f"ds_read_b128 {vr(K1LO,4)}, v{AK1}")
    e(f"ds_read_b128 {vr(K1HI,4)}, v{AK1} offset:1024")
    e(f"ds_read_b32 v{K2R}, v{AK2}")
    for j in range(3):
        for r in rdV(j, 0):
            e(r)
    for i in range(32):
        e(f"v_mov_b32 v{OA+i}, 0")
    for i in range(8):
        e(f"v_mov_b32 v{Y_+24+i}, 0")
    e("s_waitcnt lgkmcnt(0)")
    e(f"v_mfma_f32_32x32x16_bf16 {vr(X_,16)}, {vr(K1LO,4)}, {vr(Q1A,4)}, 0")
    e(f"v_mfma_f32_32x32x16_bf16 {vr(X_+16,16)}, {vr(K1HI,4)}, {vr(Q1A,4)}, 0")
    e("s_nop 10")
    e(f"v_mfma_f32_32x32x4_2b_bf16 {vr(X_,32)}, {vr(K2R,2)}, {vr(Q2A,2)}, {vr(X_,32)}")
    e("s_nop 15")
    e("s_nop 4")
    e("s_mov_b32 s54, 4")
    e("s_branch .Lattn_loop")


def gen_out(e):
    L = f"v{LANE}"
    OFS, OE = (96, 112, 128, 80), 144
    nap, pdepth = e.opt.get("nap", 0), e.opt.get("pdepth", 0)
    e(f"v_and_b32 v246, 15, {L}")
    e(f"v_lshrrev_b32 v247, 4, {L}")
    e("v_lshrrev_b32 v3, 1, v247")
    e("v_lshlrev_b32 v3, 16, v3")
    e("v_and_b32 v4, 1, v247")
    e("v_lshl_add_u32 v3, v4, 9, v3")
    e("v_lshl_add_u32 v248, v246, 4, v3")
    e("s_lshr_b32 s61, s3, 2")
    e("s_lshl_b32 s61, s61, 4")
    e("s_and_b32 s62, s3, 3")
    e("s_add_u32 s61, s61, s62")
    e("s_lshl_b32 s58, s61, 17")
    e("s_lshl_b32 s59, s50, 11")
    e("s_add_u32 s58, s58, s59")
    e(f"s_add_u32 s58, s58, {O1}")
    for r in range(4):
        e(f"s_add_u32 s{62+r}, s4, {r + 1}")
        e(f"s_and_b32 s{62+r}, s{62+r}, 3")
        e(f"s_lshl_b32 s{62+r}, s{62+r}, 19")
        e(f"s_add_u32 s{62+r}, s{62+r}, s58")
    e("s_and_b32 s66, s4, 3")
    e("s_lshl_b32 s66, s66, 1")
    e("s_lshl_b32 s67, 3, s66")
    e("s_andn2_b32 s67, 0xff, s67")

    def o_loads(r):
        for tt in range(4):
            e(f"buffer_load_dwordx4 {vr(OFS[r]+4*tt,4)}, v248, {WS}, s{62+r} offen offset:{(tt//2)*1024+(tt%2)*256} sc1")

    def o_mfma(st, first=False):
        for tt in range(4):
            for tile in range(5):
                acc = vr((tt * 5 + tile) * 4, 4)
                e(f"v_mfma_f32_16x16x32_bf16 {acc}, {vr(WOM+20*st+4*tile,4)}, {vr(OFS[st]+4*tt,4)}, {'0' if first else acc}")

    def publish(pending):
        e("v_lshlrev_b32 v3, 16, v247")
        e("v_lshl_add_u32 v249, v246, 2, v3")
        e("v_mov_b32 v4, 0")
        e("s_lshl_b32 s59, s61, 14")
        e("s_lshl_b32 s60, s50, 8")
        e("s_add_u32 s59, s59, s60")
        e(f"s_add_u32 s59, s59, {O2}")
        e("s_add_u32 s61, s59, 8192")
        e(f"s_waitcnt vmcnt({pending})")
        e("s_mov_b64 exec, 1")
        e(f"buffer_store_dword v250, v4, {WS}, s21 offen sc1" if False else f"buffer_store_dword v{LANE + 1}, v4, {WS}, s21 offen sc1")
        e("s_mov_b64 exec, -1")
        e.stamp(8)
        e("s_barrier")
        e.stamp(9)

    def extra_loads():
        for tt in range(4):
            e(f"buffer_load_dword v{OE+2*tt}, v249, {WS}, s59 offen offset:{tt*64} sc1")
            e(f"buffer_load_dword v{OE+2*tt+1}, v249, {WS}, s61 offen offset:{tt*64} sc1")

    e(f"v_mov_b32 v{LANE + 1}, 1")
    publish(0)
    poll(e, 254, 250, WS, "s20", "v_cmp_ne_u32 vcc, 0, v254", "s67", nap=nap, depth=pdepth)
    o_loads(0)
    o_loads(1)
    e("s_waitcnt vmcnt(4)")
    e.stamp(10)
    o_loads(2)
    e(f"buffer_load_dword v254, v250, {WS}, s20 offen sc1")
    o_mfma(0, True)
    e("s_waitcnt vmcnt(5)")
    o_mfma(1)
    poll(e, 254, 250, WS, "s20", "v_cmp_ne_u32 vcc, 0, v254", 0xff, first_loaded=True, nap=nap, depth=pdepth)
    o_loads(3)
    extra_loads()
    o_mfma(2)
    e("s_waitcnt vmcnt(8)")
    o_mfma(3)
    e.label(".Lout_extra")
    e("s_mul_i32 s58, s3, 18432")
    e(f"v_lshl_add_u32 v244, {L}, 4, s58")
    e("s_and_b32 s58, s3, 3" if e.opt.get("rrole", 2) else "s_lshr_b32 s58, s3, 1")
    e("s_mul_i32 s59, s58, 4608")
    e("s_lshr_b32 s60, s3, 2" if e.opt.get("rrole", 2) else "s_and_b32 s60, s3, 1")
    if e.opt.get("rrole", 2) == 2:
        e("s_xor_b32 s60, s60, 1")
    e("s_lshl_b32 s61, s60, 11")
    e("s_add_u32 s59, s59, s61")
    e(f"v_lshl_add_u32 v245, {L}, 4, s59")
    e(f"v_add_u32 v250, {3*18432}, v245")
    e(f"v_add_u32 v251, {6*18432}, v245")
    e(f"v_cmp_gt_u32 vcc, 32, {L}")
    e("v_mov_b32 v253, 0x40000")
    e("s_nop 0")
    e("v_cndmask_b32 v253, v253, v244, vcc")
    e("s_waitcnt vmcnt(0)")
    pend = []
    for tt in range(4):
        for tile in range(5):
            acc = vr((tt * 5 + tile) * 4, 4)
            e(f"v_mfma_f32_16x16x16_bf16 {acc}, {vr(WOE+2*tile,2)}, {vr(OE+2*tt,2)}, {acc}")
            pend.append(f"ds_write_b128 v{244 if tile < 4 else 253}, {acc} offset:{tt*4608 + tile*1024}")
            if len(pend) > 8:
                e(pend.pop(0))
    e.stamp(11)
    e("s_nop 3")
    for x in pend:
        e(x)
    srd(e, 20, 42, 2048 * 1152)
    e("s_lshl_b32 s59, s50, 6")
    e("s_lshl_b32 s58, s58, 4")
    e("s_add_u32 s59, s59, s58")
    e("v_add_u32 v84, s59, v246")
    e("v_mul_u32_u24 v84, 1152, v84")
    e("v_lshl_add_u32 v85, v247, 3, v84")
    e("v_lshl_add_u32 v84, v247, 4, v84")
    e("s_mul_i32 s59, s51, 144")
    e("s_lshl_b32 s61, s60, 6")
    e("s_add_u32 s61, s61, s59")
    e("s_waitcnt lgkmcnt(0)")
    e("s_barrier")
    e.stamp(12)

    def rd(dst, src, off):
        a, o = (245, 250, 251)[src // 3], (src % 3) * 18432 + off
        e(f"ds_read_b128 {vr(dst,4)}, v{a} offset:{o}")

    def tree(b):
        for step in (1, 2):
            for k in range(0, 8, 2 * step):
                for h in range(2):
                    e(f"v_pk_add_f32 {vr(b+4*k+2*h,2)}, {vr(b+4*k+2*h,2)}, {vr(b+4*(k+step)+2*h,2)}")
        for j in range(4):
            e(f"v_mul_f32 v{b+j}, v{GT}, v{b+j}")
        for j in range(4):
            e(f"v_fmac_f32 v{b+j}, v{GT+1}, v{b+16+j}")

    for t in range(2):
        for src in range(8):
            rd(t * 32 + 4 * src, src, t * 1024)
    e("s_waitcnt lgkmcnt(8)")
    tree(0)
    e("v_cvt_pk_bf16_f32 v88, v0, v1")
    e("v_cvt_pk_bf16_f32 v89, v2, v3")
    e("s_cmp_eq_u32 s60, 0")
    e("s_cbranch_scc1 .Lout_half0")
    for src in range(8):
        rd(96 + 4 * src, src, 2048)
    e("s_waitcnt lgkmcnt(8)")
    tree(32)
    e("v_cvt_pk_bf16_f32 v90, v32, v33")
    e("v_cvt_pk_bf16_f32 v91, v34, v35")
    e(f"buffer_store_dwordx4 v[88:91], v84, s[20:23], s61 offen{['', ' nt', ' sc1', ' sc0 sc1'][e.opt.get('ont', 0)]}")
    e("s_waitcnt lgkmcnt(0)")
    tree(96)
    e("v_cvt_pk_bf16_f32 v92, v96, v97")
    e("v_cvt_pk_bf16_f32 v93, v98, v99")
    e("s_mov_b32 exec_hi, 0")
    e(f"buffer_store_dwordx2 v[92:93], v85, s[20:23], s59 offen offset:128{['', ' nt', ' sc1', ' sc0 sc1'][e.opt.get('ont', 0)]}")
    e("s_mov_b32 exec_hi, -1")
    e("s_branch .Lout_fin")
    e.label(".Lout_half0")
    e("s_waitcnt lgkmcnt(0)")
    tree(32)
    e("v_cvt_pk_bf16_f32 v90, v32, v33")
    e("v_cvt_pk_bf16_f32 v91, v34, v35")
    e(f"buffer_store_dwordx4 v[88:91], v84, s[20:23], s61 offen{['', ' nt', ' sc1', ' sc0 sc1'][e.opt.get('ont', 0)]}")
    e.label(".Lout_fin")
    if "echoA" in e.opt:
        a, b = 72 + 2 * e.opt["echoA"], 72 + 2 * e.opt["echoB"]
        e("s_waitcnt vmcnt(0)")
        e.stamp(13)
        e(f"s_sub_u32 s60, s{b}, s{a}")
        e("s_add_u32 s60, s60, s98")
        e.label(".Lecho")
        e("s_memrealtime s[62:63]")
        e("s_waitcnt lgkmcnt(0)")
        e("s_sub_u32 s61, s62, s60")
        e("s_cmp_lt_i32 s61, 0")
        e("s_cbranch_scc1 .Lecho")
        e("s_endpgm")
    if getattr(e, "final", 0):
        e.opt = dict(e.opt, stamp=e.final)
    if e.opt.get("stamp"):
        e("s_waitcnt vmcnt(0)")
        e.stamp(13)
        e("s_lshl_b32 s68, s2, 3")
        e("s_add_u32 s68, s68, s3")
        e("s_lshl_b32 s68, s68, 7")
        e(f"s_add_u32 s68, s68, {STAMP}")
        e("s_mov_b64 exec, 1")
        e("v_mov_b32 v0, 0")
        for k in range(7):
            for j in range(4):
                e(f"v_mov_b32 v{4+j}, s{72+4*k+j}")
            e(f"buffer_store_dwordx4 v[4:7], v0, {WS}, s68 offen offset:{16*k}")
            e("s_nop 1")


HEAD = """; Kernarg layout for this problem (80 bytes, ptrs only, base s[0:1]):
"""


DOC = """;
"""


def generate(opt=None):
    opt = opt or {}
    e = E(opt)
    n = NAME + "_kernel"
    e.raw(HEAD.rstrip())
    lst = opt.get("aslist", 0)
    if lst in (2, 4):
        e.raw(f"; @launch kernel=nop_kernel grid=(256,1,1) block=({256 if lst == 2 else 512},1,1) lds={0 if lst == 2 else LDS_BYTES}")
    if lst:
        e.raw(f"; @launch kernel={n} grid=(256,1,1) block=(512,1,1) lds={LDS_BYTES}")
    else:
        e.raw(f"; @launch grid=(256,1,1) block=(512,1,1) lds={LDS_BYTES}")
    if lst in (3, 5):
        e.raw(f"; @launch kernel=nop_kernel grid=(256,1,1) block=({256 if lst == 3 else 512},1,1) lds={0 if lst == 3 else LDS_BYTES}")
    e.raw(DOC.rstrip())
    e.raw('.amdgcn_target "amdgcn-amd-amdhsa--gfx950"')
    if lst > 1:
        e.raw(".text\n.globl nop_kernel\n.p2align 8\n.type nop_kernel,@function\nnop_kernel:\n    s_endpgm")
        e.raw('.section .rodata,"a"\n.p2align 6\n.amdhsa_kernel nop_kernel')
        e.raw(f"  .amdhsa_next_free_vgpr {8 if lst < 4 else 256}\n  .amdhsa_next_free_sgpr 16\n  .amdhsa_accum_offset {8 if lst < 4 else 256}")
        e.raw("  .amdhsa_group_segment_fixed_size 0\n  .amdhsa_kernarg_size 80\n  .amdhsa_user_sgpr_count 2\n  .amdhsa_user_sgpr_kernarg_segment_ptr 1\n  .amdhsa_system_sgpr_workgroup_id_x 1\n.end_amdhsa_kernel")
    e.raw(".text")
    e.raw(f".globl {n}")
    e.raw(".p2align 8")
    e.raw(f".type {n},@function")
    e.label(n)
    e("s_cmp_ge_u32 s2, 256")
    e("s_cbranch_scc1 .Lend")
    e.stamp(0)
    e("s_load_dwordx16 s[28:43], s[0:1], 0")
    e("s_load_dwordx4 s[44:47], s[0:1], 64")
    e("v_lshrrev_b32 v1, 6, v0")
    e(f"v_and_b32 v{LANE}, 63, v0")
    e("v_readfirstlane_b32 s3, v1")
    e("s_and_b32 s4, s2, 7")
    e("s_lshr_b32 s5, s2, 3")
    e("s_getreg_b32 s6, hwreg(HW_REG_XCC_ID, 0, 4)")
    e("s_add_u32 s6, s6, 1")
    e("s_lshr_b32 s48, s5, 1")
    e("s_and_b32 s49, s5, 1")
    e("s_cmp_ge_u32 s3, 4")
    e("s_cbranch_scc0 .Lconsumer")
    gen_loader(e)
    e.label(".Lconsumer")
    gen_consumer(e)
    attn_setup(e)
    e.label(".Lp2_join")
    gen_attn(e)
    gen_out(e)
    e.label(".Lend")
    e("s_endpgm")
    gen_fallback(e)
    e.raw('.section .rodata,"a"')
    e.raw(".p2align 6")
    e.raw(f".amdhsa_kernel {n}")
    e.raw("  .amdhsa_next_free_vgpr 256")
    e.raw("  .amdhsa_next_free_sgpr 100")
    e.raw("  .amdhsa_accum_offset 256")
    e.raw("  .amdhsa_group_segment_fixed_size 0")
    e.raw("  .amdhsa_kernarg_size 80")
    e.raw("  .amdhsa_user_sgpr_count 2")
    e.raw("  .amdhsa_user_sgpr_kernarg_segment_ptr 1")
    e.raw("  .amdhsa_system_sgpr_workgroup_id_x 1")
    e.raw(".end_amdhsa_kernel")
    return e.text()


if __name__ == "__main__":
    out = f"cdna_kernels/{NAME}.s"
    opt = {}
    for a in sys.argv[1:]:
        if a.startswith("-o="):
            out = a[3:]
        else:
            k, v = a.split("=")
            opt[k] = tuple(int(x) for x in v.split(",")) if k == "keep" else int(v)
    open(out, "w").write(generate(opt))
    print("wrote", out)
```

```python
import math, struct, sys

NAME = "gated_mix__softmax_full_mha__softmax_full_mha__prompt"

CH = 4864
VX, VM = 2176, 2816
KVSZ = 32 * CH
QCH = 2304
QOFF = KVSZ
HS = KVSZ + 32 * QCH
GATE = 64 * HS
FLG = GATE + 16384
F1L, F1G, F2, FW, FO = FLG, FLG + 1024, FLG + 2048, FLG + 3072, FLG + 4096
O1 = 15 * 1024 * 1024
O2 = O1 + 64 * 65536
WOP = O2 + 64 * 8192
WSET = 23040
WS_BYTES = 268435456
STAMP = 32 * 1024 * 1024
OOB = 0x80000000
SPIN = 3000000

QSCALE = (18 ** -0.5) * math.log2(math.e)
WSLOT, XSLOT, XB = 32768, 16384, 98304
LDS_BYTES = KVSZ + CH

LANE, AV0, T0, T1 = 252, 253, 254, 255
WG = 220
GX = 152
PIECE = 21
WS = "s[8:11]"


def f32(x):
    return "0x%08x" % struct.unpack("<I", struct.pack("<f", x))[0]


class E:
    def __init__(s, opt):
        s.l = []
        s.opt = opt
        s.n = 0

    def __call__(s, x):
        s.l.append("    " + x)

    def label(s, x):
        s.l.append(x + ":")

    def raw(s, x):
        s.l.append(x)

    def uid(s, p):
        s.n += 1
        return f".L{p}{s.n}"

    def stamp(s, slot):
        m = s.opt.get("stamp")
        if m == 3:
            if slot not in (0, 13) and slot not in s.opt.get("keep", ()):
                return
            m = 1
        if m:
            b = 72 + 2 * slot
            s(f"{'s_memrealtime' if m == 1 else 's_memtime'} s[{b}:{b+1}]")
            s("s_waitcnt lgkmcnt(0)")

    def text(s):
        return "\n".join(s.l) + "\n"


def vr(b, n):
    return f"v[{b}:{b+n-1}]" if n > 1 else f"v{b}"


def srd(e, d, ptr, nbytes):
    e(f"s_mov_b32 s{d}, s{ptr}")
    e(f"s_mov_b32 s{d+1}, s{ptr+1}")
    e(f"s_mov_b32 s{d+2}, {nbytes}")
    e(f"s_mov_b32 s{d+3}, 0x00020000")


def poll(e, vdst, vaddr, rsrc, soff, cmp, mask, first_loaded=False, nap=0, depth=0):
    top, done, ld = e.uid("poll"), e.uid("polld"), e.uid("polll")
    e(f"s_mov_b32 s70, {SPIN}")
    if isinstance(mask, str):
        e(f"s_mov_b32 s68, {mask}")
        e("s_mov_b32 s69, 0")
    else:
        e(f"s_mov_b32 s68, {mask & 0xffffffff:#x}")
        e(f"s_mov_b32 s69, {mask >> 32:#x}")
    if depth:
        if not first_loaded:
            e(f"buffer_load_dword v{vdst}, v{vaddr}, {rsrc}, {soff} offen sc1")
        e("s_waitcnt vmcnt(0)")
        e(cmp)
        e("s_and_b64 vcc, vcc, s[68:69]")
        e("s_cmp_eq_u64 vcc, s[68:69]")
        e(f"s_cbranch_scc1 {done}")
        for _ in range(depth):
            e(f"buffer_load_dword v{vdst}, v{vaddr}, {rsrc}, {soff} offen sc1")
            if nap:
                e(f"s_sleep {nap}")
    elif first_loaded:
        e(f"s_branch {ld}")
    e.label(top)
    e(f"buffer_load_dword v{vdst}, v{vaddr}, {rsrc}, {soff} offen sc1")
    if first_loaded and not depth:
        e.label(ld)
    e(f"s_waitcnt vmcnt({depth})")
    e(cmp)
    e("s_and_b64 vcc, vcc, s[68:69]")
    e("s_cmp_eq_u64 vcc, s[68:69]")
    e(f"s_cbranch_scc1 {done}")
    if nap:
        e(f"s_sleep {nap}")
    e("s_sub_u32 s70, s70, 1")
    e("s_cmp_lg_u32 s70, 0")
    e(f"s_cbranch_scc1 {top}")
    e.label(done)


def wo_job_addr(e, dst, s_tile, s_row, is_extra_sel, s_valid):
    e(f"s_lshr_b32 s60, {s_tile}, 1")
    e("s_lshl_b32 s60, s60, 5")
    e(f"s_and_b32 s61, {s_tile}, 1")
    e("s_lshl_b32 s61, s61, 2")
    e("s_add_u32 s60, s60, s61")
    e("s_add_u32 s60, s60, s58")
    e(f"s_cmp_eq_u32 {s_tile}, 4")
    e("s_cselect_b64 vcc, -1, 0")
    e("s_cselect_b32 s61, 8, 16")
    e(f"s_min_u32 s61, s61, {s_valid}")
    e("v_cndmask_b32 v4, v3, v1, vcc")
    e("v_add_u32 v4, s60, v4")
    e(f"v_cndmask_b32 v5, v6, v7, {is_extra_sel}")
    e(f"v_add_u32 v5, {s_row}, v5")
    e("v_mul_u32_u24 v5, 1152, v5")
    e("v_lshl_add_u32 v5, v4, 1, v5")
    e("v_cmp_gt_u32 vcc, s61, v1")
    e(f"v_mov_b32 v4, {OOB:#x}")
    e("s_nop 0")
    e(f"v_cndmask_b32 v{dst}, v4, v5, vcc")


def w_prefetch_addr(e, dst):
    L = f"v{LANE}"
    e("s_mul_i32 s52, s5, 2")
    e(f"v_mul_u32_u24 v2, 57, {L}")
    e("v_lshrrev_b32 v2, 9, v2")
    e("v_mul_u32_u24 v3, 9, v2")
    e(f"v_sub_u32 v3, {L}, v3")
    e("v_add_u32 v2, s52, v2")
    e("v_mul_u32_u24 v4, 11, v3")
    e("v_lshrrev_b32 v4, 5, v4")
    e("v_mul_u32_u24 v4, 768, v4")
    e("v_lshl_add_u32 v4, v3, 7, v4")
    e("v_mul_u32_u24 v2, 3456, v2")
    e("s_and_b32 s52, s4, 3")
    e("s_lshl_b32 s52, s52, 8")
    e("v_add3_u32 v2, v2, v4, s52")
    e(f"v_cmp_gt_u32 vcc, 18, {L}")
    e(f"v_mov_b32 v5, {OOB:#x}")
    e(f"v_and_b32 v3, {1 if e.opt.get('xpf') else 3}, {L}")
    if e.opt.get("xpf"):
        e("v_or_b32 v3, 2, v3")
    e("v_cndmask_b32 v2, v5, v2, vcc")
    e("v_cmp_eq_u32 vcc, s3, v3")
    e("s_nop 1")
    e(f"v_cndmask_b32 v{dst}, v5, v2, vcc")


def gen_loader(e):
    opt = e.opt
    L = f"v{LANE}"
    e("s_sub_u32 s50, s3, 4")
    if opt.get("lprio"):
        e(f"s_setprio {opt['lprio']}")
    e(f"v_lshrrev_b32 v1, 3, {L}")
    e(f"v_and_b32 v2, 7, {L}")
    e(f"v_lshrrev_b32 v3, 4, {L}")
    e("v_xor_b32 v4, v2, v3")
    e("v_xor_b32 v5, 4, v4")
    e("s_lshl_b32 s51, s48, 7")
    if opt.get("x_samex"):
        e("s_mov_b32 s51, 0")
    e("s_lshl_b32 s52, s50, 5")
    e("s_add_u32 s51, s51, s52")
    e("v_add_u32 v1, s51, v1")
    e("v_mul_u32_u24 v1, 1152, v1")
    for j in range(4):
        e(f"v_lshl_add_u32 v{10+j}, v{4 + j % 2}, 4, v1")
        if j:
            e(f"v_add_u32 v{10+j}, {j*8*1152}, v{10+j}")
    e("s_lshl_b32 s56, s50, 12")
    e(f"s_add_u32 s56, s56, {XB}")
    e("s_lshl_b32 s57, s50, 10")
    e("s_and_b32 s52, s4, 3")
    e("s_mul_i32 s52, s52, 288")
    e("s_and_b32 s53, s52, 0xffc0")
    e("s_add_u32 s54, s52, 144")
    e("s_and_b32 s54, s54, 0xffc0")
    e("s_add_u32 s54, s54, 1152")
    e(f"s_mov_b32 s55, {2304-192}")
    e("s_cmp_eq_u32 s49, 0")
    e("s_cselect_b32 s54, s53, s54")
    e(f"s_cselect_b32 s55, {1152-320}, s55")
    e("s_cselect_b32 s58, 20, 12")
    e("s_add_u32 s55, s55, s53")
    e(f"v_lshrrev_b32 v1, 5, {L}")
    e("v_lshlrev_b32 v2, 1, v1")
    e(f"v_xor_b32 v2, {L}, v2")
    e("s_and_b32 s59, s50, 1")
    e("s_lshl_b32 s59, s59, 2")
    e("v_subrev_u32 v2, s59, v2")
    e("s_lshl_b32 s59, s50, 1")
    e("v_add_u32 v1, s59, v1")
    e("v_mul_u32_u24 v1, 3456, v1")
    e("v_mov_b32 v5, s54")
    e("v_mov_b32 v6, s55")
    for h in range(2):
        if h:
            e("v_subrev_u32 v2, 8, v2")
        e("v_and_b32 v3, 31, v2")
        e("v_cmp_gt_u32 vcc, s58, v3")
        e("v_lshl_add_u32 v3, v3, 4, v1")
        e("s_nop 0")
        e("v_cndmask_b32 v4, v6, v5, vcc")
        e(f"v_add_u32 v{14+h}, v3, v4")

    def issue_x(stage):
        e(f"s_mov_b32 s60, {stage*128}")
        for j in range(4):
            e(f"s_add_u32 m0, s56, {(stage % 3) * XSLOT + j*1024}")
            e("s_nop 0")
            e(f"buffer_load_dwordx4 v{10+j}, s[12:15], s60 offen lds")

    def issue_w(stage, js):
        for j in js:
            e(f"s_add_u32 m0, s57, {(stage % 3) * WSLOT + j*4096}")
            e(f"s_mov_b32 s61, {(stage*64 + j*8)*3456}")
            e(f"buffer_load_dwordx4 v{14 + j % 2}, s[16:19], s61 offen lds")

    def touch():
        e("s_lshl_b32 s58, s4, 3")
        e("s_lshr_b32 s59, s5, 2")
        e("s_add_u32 s58, s58, s59")
        e(f"s_mul_i32 s58, s58, {HS}")
        e("s_and_b32 s59, s5, 3")
        e("s_lshl_b32 s59, s59, 2")
        e("s_add_u32 s59, s59, s50")
        e(f"s_mul_i32 s60, s59, {2*QCH}")
        e(f"s_add_u32 s60, s60, {QOFF}")
        e("s_mul_i32 s59, s59, 2560")
        e(f"s_sub_u32 s59, s59, {36*128}")
        e("v_mov_b32 v1, s59")
        e("v_mov_b32 v2, s60")
        e(f"v_cmp_gt_u32 vcc, 36, {L}")
        e(f"v_mov_b32 v3, {OOB:#x}")
        e("s_nop 0")
        e("v_cndmask_b32 v1, v1, v2, vcc")
        e(f"v_lshl_add_u32 v1, {L}, 7, v1")
        e(f"v_cmp_gt_u32 vcc, 56, {L}")
        e("s_nop 1")
        e("v_cndmask_b32 v1, v3, v1, vcc")
        e(f"buffer_load_dword v23, v1, {WS}, s58 offen sc1{' nt' if opt.get('tnt') else ''}")

    def counter_load():
        srd(e, 24, 44, 256)
        e(f"v_lshlrev_b32 v57, 6, {L}")
        e("buffer_load_dword v58, v57, s[24:27], 0 offen sc1")

    def gate_loads():
        srd(e, 20, 40, 1152)
        e("s_lshl_b32 s52, s4, 8")
        e("s_lshl_b32 s53, s5, 3")
        e("s_add_u32 s52, s52, s53")
        e("s_lshl_b32 s53, s50, 1")
        e("s_add_u32 s52, s52, s53")
        e(f"v_lshrrev_b32 v1, 5, {L}")
        e("v_add_u32 v1, s52, v1")
        e(f"v_and_b32 v4, 31, {L}")
        e("v_mul_u32_u24 v2, 36, v4")
        e("v_mov_b32 v3, 1152")
        e("v_mad_u32_u24 v3, v1, v3, v2")
        e(f"buffer_load_dwordx4 {vr(GX,4)}, v3, s[12:15], 0 offen")
        e(f"buffer_load_dwordx4 {vr(GX+4,4)}, v3, s[12:15], 0 offen offset:16")
        e(f"buffer_load_dword v{GX+8}, v3, s[12:15], 0 offen offset:32")
        e(f"buffer_load_dwordx4 {vr(GX+12,4)}, v2, s[20:23], 0 offen")
        e(f"buffer_load_dwordx4 {vr(GX+16,4)}, v2, s[20:23], 0 offen offset:16")
        e(f"buffer_load_dword v{GX+20}, v2, s[20:23], 0 offen offset:32")
        e("v_lshlrev_b32 v1, 2, v1")
        e("v_cmp_eq_u32 vcc, 0, v4")
        e(f"v_mov_b32 v5, {OOB:#x}")
        e(f"v_mov_b32 v{GX+9}, 0")
        e(f"v_cndmask_b32 v{GX+22}, v5, v1, vcc")

    def wo_gather():
        e(f"v_and_b32 v1, 15, {L}")
        e(f"v_lshrrev_b32 v2, 4, {L}")
        e("v_lshrrev_b32 v3, 2, v1")
        e("v_and_b32 v4, 3, v1")
        e("v_lshl_add_u32 v3, v3, 3, v4")
        e("v_lshrrev_b32 v6, 1, v2")
        e("v_mul_u32_u24 v6, 20, v6")
        e("v_and_b32 v4, 1, v2")
        e("v_lshl_add_u32 v6, v4, 3, v6")
        e("v_mul_u32_u24 v7, 144, v2")
        e("s_lshr_b32 s58, s2, 5")
        e("s_mul_i32 s58, s58, 72")
        e("s_bfe_u32 s59, s2, 0x20002")
        e("s_mul_i32 s59, s59, 36")
        e("s_and_b32 s62, s2, 3")
        e("s_mul_i32 s63, s62, 144")
        e("s_add_u32 s63, s63, s59")
        e("s_add_u32 s59, s59, 16")
        e("s_mov_b64 s[64:65], 0")
        e("s_mov_b32 s66, 16")
        wo_job_addr(e, 24, "s50", "s63", "s[64:65]", "s66")
        e("s_cmp_eq_u32 s50, 1")
        e("s_cselect_b32 s67, s62, 4")
        e("s_cmp_eq_u32 s62, 0")
        e("s_cselect_b32 s66, 3, 2")
        e("s_cmp_lt_u32 s50, s66")
        e("s_cselect_b32 s66, 16, 0")
        e("s_cmp_ge_u32 s50, 1")
        e("s_cselect_b64 s[64:65], -1, 0")
        e("s_cselect_b32 s71, s59, s63")
        wo_job_addr(e, 25, "s67", "s71", "s[64:65]", "s66")
        e("s_bitcmp1_b32 s2, 4")
        e("s_cselect_b32 s20, s38, s32")
        e("s_cselect_b32 s21, s39, s33")
        e(f"s_mov_b32 s22, {576*1152}")
        e("s_mov_b32 s23, 0x00020000")
        e(f"s_mov_b32 s60, {4*1152}")
        for job in range(2):
            for j in range(8):
                so = "0" if j < 4 else "s60"
                e(f"buffer_load_ushort v{WG+8*job+j}, v{24+job}, s[20:23], {so} offen offset:{(j%4)*1152}{' nt' if opt.get('wont') else ''}")

    lag = opt.get("lag", 0)
    order = []

    def do(item):
        k, st = item[:2]
        if k == "x":
            issue_x(st)
            order.append((k, st, 4))
        elif k == "w":
            for j in item[2]:
                issue_w(st, [j])
                order.append((k, st, 1, j))
        elif k == "t":
            touch()
            order.append((k, st, 1))
        elif k == "g":
            counter_load()
            order.append((k, st, 1))

    head, tail = range(0, 8 - lag), range(8 - lag, 8)
    e("s_waitcnt lgkmcnt(0)")
    common_srds(e)
    for it in [("x", 0), ("w", 0, range(8)), ("x", 1), ("w", 1, head)]:
        do(it)

    def after(pred):
        idx = max(k for k, o in enumerate(order) if pred(o))
        return sum(o[2] for o in order[idx+1:])

    for s in range(9):
        if s == 8:
            e(f"s_waitcnt vmcnt({after(lambda o: o[0] == 'w' and o[1] == 8 and o[3] == 3)})")
            e("s_barrier")
        e(f"s_waitcnt vmcnt({after(lambda o: o[0] in 'xw' and o[1] == s)})")
        if opt.get("lstamp") == 2:
            e.stamp(2 + s)
        e("s_barrier")
        if opt.get("lstamp") == 1:
            e.stamp(2 + s)
        if s == 0:
            e.stamp(1)
        if s + 1 <= 8:
            do(("w", s + 1, tail))
        if s + 2 <= 8:
            do(("x", s + 2))
            do(("w", s + 2, head))
        if s == opt.get("gpos", 7):
            do(("g", 0))
        if s == opt.get("touch", 7):
            do(("t", 0))
    e(f"s_waitcnt vmcnt({1 if order[-1][0] == 't' else 0})")
    gate_loads()
    if opt.get("lstamp"):
        e.final = opt["stamp"]
        e.opt = dict(opt, stamp=0)
    e.stamp(2)
    e("s_cmp_eq_u32 s3, 4")
    e("s_cbranch_scc1 .Lwave4")
    wo_gather()
    sm = opt.get("sidemode", 1)
    if sm == 1:
        e("s_waitcnt vmcnt(0)")
        side_calc(e)
    attn_setup(e)
    e("s_barrier")
    e.stamp(3)
    e("s_branch .Lp2_join")
    e.label(".Lwave4")
    e("v_cmp_le_u32 vcc, 64, v58")
    e("s_and_b32 s68, vcc_lo, 15")
    e("s_cmp_eq_u32 s68, 15")
    e("s_cbranch_scc1 .Lcleared")
    poll(e, 58, 57, "s[24:27]", "0", "v_cmp_le_u32 vcc, 64, v58", 0xf)
    e.label(".Lcleared")
    e("s_lshl_b32 s71, s4, 7")
    e(f"s_add_u32 s71, s71, {F1L}")
    e(f"v_and_b32 v13, 31, {L}")
    e("v_lshlrev_b32 v13, 2, v13")
    e(f"buffer_load_dword v14, v13, {WS}, s71 offen sc1")
    e("s_mov_b32 s7, s71")
    wo_gather()
    attn_setup(e)
    e("s_lshl_b32 s61, s5, 2")
    e("v_mov_b32 v11, s61")
    e("v_mov_b32 v12, s6")
    e(f"s_mov_b32 s70, {SPIN}")
    e("s_barrier")
    e.stamp(3)
    e("s_mov_b64 exec, 1")
    e(f"buffer_store_dword v12, v11, {WS}, s7 offen")
    e("s_mov_b64 exec, -1")
    e.label(".Lsync1")
    e(f"buffer_load_dword v14, v13, {WS}, s7 offen sc1")
    e("s_waitcnt vmcnt(0)")
    e("v_cmp_eq_u32 vcc, s6, v14")
    e("s_cmp_eq_u32 vcc_lo, -1")
    e("s_cbranch_scc1 .Lsync1_far" if opt.get("forceslow") else "s_cbranch_scc1 .Lp2_join")
    e("s_sub_u32 s70, s70, 1")
    e("s_and_b32 s68, s70, 31")
    e("s_cbranch_scc1 .Lsync1")
    e("s_mov_b64 exec, 1")
    e(f"buffer_store_dword v12, v11, {WS}, s7 offen offset:1024 sc1")
    e("s_mov_b64 exec, -1")
    e(f"buffer_load_dword v14, v13, {WS}, s7 offen offset:1024 sc1")
    e("s_waitcnt vmcnt(0)")
    e("v_cmp_eq_u32 vcc, s6, v14")
    e("v_cmp_eq_u32 s[68:69], 0, v14")
    e("s_cmp_eq_u32 vcc_lo, -1")
    e("s_cbranch_scc1 .Lp2_join")
    e("s_or_b32 s68, s68, vcc_lo")
    e("s_cmp_eq_u32 s68, -1")
    e("s_cbranch_scc0 .Lsync1_far")
    e("s_cmp_gt_u32 s70, 32")
    e("s_cbranch_scc1 .Lsync1")
    e.label(".Lsync1_far")
    e("buffer_wbl2 sc1")
    e("s_waitcnt vmcnt(0)")
    e("s_add_u32 s7, s7, 2048")
    e("s_mov_b64 exec, 1")
    e(f"buffer_store_dword v12, v11, {WS}, s7 offen sc1")
    e("s_mov_b64 exec, -1")
    poll(e, 14, 13, WS, "s7", "v_cmp_ne_u32 vcc, 0, v14", 0xffffffff)
    e("buffer_inv sc1")
    e("s_waitcnt vmcnt(0)")
    e("s_branch .Lp2_join")


def side_calc(e):
    z, t = GX + 9, GX + 10
    for j in range(9):
        e(f"v_dot2c_f32_bf16 v{z}, v{GX+j}, v{GX+12+j}")
    e("s_nop 2")
    for ctl in ("quad_perm:[1,0,3,2]", "quad_perm:[2,3,0,1]", "row_half_mirror", "row_mirror"):
        e(f"v_add_f32_dpp v{z}, v{z}, v{z} {ctl} row_mask:0xf bank_mask:0xf")
        e("s_nop 1")
    e(f"v_mov_b32 v{t}, v{z}")
    e("s_nop 1")
    e(f"v_permlane16_swap_b32 v{z}, v{t}")
    e("s_nop 1")
    e(f"v_add_f32 v{z}, v{z}, v{t}")
    e(f"v_mul_f32 v{z}, {f32(-math.log2(math.e))}, v{z}")
    e(f"v_exp_f32 v{z}, v{z}")
    e("s_nop 0")
    e(f"v_add_f32 v{z}, 1.0, v{z}")
    e(f"v_rcp_f32 v{z}, v{z}")
    e("s_nop 0")
    e(f"v_sub_f32 v{t}, 1.0, v{z}")
    for job in range(2):
        for j in range(4):
            e(f"v_lshl_or_b32 v{WG+8*job+j}, v{WG+8*job+2*j+1}, 16, v{WG+8*job+2*j}")


def wo_store(e):
    L = f"v{LANE}"
    e("s_cmp_ge_u32 s3, 4")
    e("s_cbranch_scc0 .Lwo_done")
    z, t = GX + 9, GX + 10
    if e.opt.get("sidemode", 1) == 1:
        e("s_cmp_eq_u32 s3, 4")
        e("s_cbranch_scc0 .Lside_ready")
    side_calc(e)
    e.label(".Lside_ready")
    e(f"s_mov_b32 s60, {GATE}")
    e(f"s_mov_b32 s61, {GATE + 8192}")
    e(f"buffer_store_dword v{z}, v{GX+22}, {WS}, s60 offen sc1")
    e(f"buffer_store_dword v{t}, v{GX+22}, {WS}, s61 offen sc1")
    e("s_lshr_b32 s60, s2, 2")
    e(f"s_mul_i32 s60, s60, {WSET}")
    e(f"s_add_u32 s60, s60, {WOP}")
    e("s_mul_i32 s61, s62, 5120")
    e("s_add_u32 s61, s61, s60")
    e("s_sub_u32 s63, s3, 4")
    e("s_lshl_b32 s63, s63, 10")
    e("s_add_u32 s63, s63, s61")
    e(f"buffer_store_dwordx4 {vr(WG,4)}, v{AK1}, {WS}, s63 offen sc1")
    e("s_cmp_eq_u32 s66, 0")
    e("s_cbranch_scc1 .Lwo_done")
    e("s_cmp_eq_u32 s3, 4")
    e("s_cbranch_scc0 .Lwo_extra")
    e("s_add_u32 s61, s61, 4096")
    e(f"buffer_store_dwordx4 {vr(WG+8,4)}, v{AK1}, {WS}, s61 offen sc1")
    e("s_branch .Lwo_done")
    e.label(".Lwo_extra")
    e("s_lshl_b32 s61, s67, 9")
    e("s_add_u32 s61, s61, s60")
    e("s_add_u32 s61, s61, 20480")
    e(f"v_lshlrev_b32 v{WG+4}, 3, {L}")
    e(f"buffer_store_dwordx2 {vr(WG+8,2)}, v{WG+4}, {WS}, s61 offen sc1")
    e.label(".Lwo_done")


def fo_word(e, d, t):
    e(f"s_and_b32 {d}, s4, 4")
    e(f"s_lshr_b32 {t}, s5, 3")
    e(f"s_add_u32 {d}, {d}, {t}")
    e(f"s_lshl_b32 {d}, {d}, 7")
    e(f"s_and_b32 {t}, s4, 3")
    e(f"s_lshl_b32 {t}, {t}, 3")
    e(f"s_add_u32 {d}, {d}, {t}")
    e(f"s_and_b32 {t}, s5, 4")
    e(f"s_add_u32 {d}, {d}, {t}")


def common_srds(e):
    if e.opt.get("wsoff"):
        e(f"s_add_u32 s8, s46, {e.opt['wsoff'] << 20}")
        e("s_addc_u32 s9, s47, 0")
        e(f"s_mov_b32 s10, {WS_BYTES - (e.opt['wsoff'] << 20)}")
        e("s_mov_b32 s11, 0x00020000")
    else:
        srd(e, 8, 46, WS_BYTES)
    srd(e, 12, 28, 0 if e.opt.get("g_nox") else 2048 * 1152)
    e("s_cmp_lt_u32 s4, 4")
    e("s_cselect_b32 s16, s30, s36")
    e("s_cselect_b32 s17, s31, s37")
    e(f"s_mov_b32 s18, {0 if e.opt.get('g_now') else 576*3456}")
    e("s_mov_b32 s19, 0x00020000")


def gen_consumer(e):
    opt = e.opt
    L = f"v{LANE}"
    e("s_and_b32 s50, s3, 1")
    e("s_lshr_b32 s51, s3, 1")
    w_prefetch_addr(e, 213)
    e(f"s_mov_b32 s71, {64*3456}")
    e("s_waitcnt lgkmcnt(0)")
    common_srds(e)

    xpf = opt.get("xpf", 0)
    if xpf:
        e("s_lshl_b32 s52, s5, 6")
        e("s_lshl_b32 s53, s3, 5")
        e("s_add_u32 s52, s52, s53")
        e(f"v_add_u32 v3, s52, {L}")
        e("v_mul_u32_u24 v3, 1152, v3")
        e(f"v_cmp_gt_u32 vcc, 32, {L}")
        e("s_cmp_lt_u32 s3, 2")
        e("s_cselect_b32 s20, s12, s16")
        e("v_cndmask_b32 v3, v5, v3, vcc")
        e("s_cselect_b32 s21, s13, s17")
        e("s_cselect_b32 s22, s14, s18")
        e("s_mov_b32 s23, 0x00020000")
        e(f"s_cselect_b32 s71, 128, s71")
        e("s_cselect_b64 vcc, -1, 0")
        e("v_cndmask_b32 v213, v213, v3, vcc")

    def prefetch(stage):
        if opt.get("nopf"):
            return
        if xpf:
            e(f"s_mul_i32 s53, s71, {stage}")
            e("buffer_load_dword v214, v213, s[20:23], s53 offen")
        else:
            e(f"s_mov_b32 s53, {stage*64*3456}")
            e("buffer_load_dword v214, v213, s[16:19], s53 offen")

    pfd = opt.get("pfd", 3)
    for st in range(opt.get("pf0", 0), pfd):
        prefetch(st)
    e("s_cmp_eq_u32 s3, 3")
    e("s_cbranch_scc0 .Lnoarrive")
    e("s_lshl_b32 s52, s4, 7")
    e("s_lshl_b32 s53, s5, 2")
    e("s_add_u32 s52, s52, s53")
    e(f"v_lshlrev_b32 v1, 10, {L}")
    e("v_add_u32 v1, s52, v1")
    e("s_lshl_b32 s52, s2, 2")
    e("s_add_u32 s52, s52, 3072")
    e("v_mov_b32 v3, s52")
    e("s_and_b32 s52, s5, 3")
    e("s_lshl_b32 s52, s52, 13")
    fo_word(e, "s53", "s54")
    e("s_add_u32 s52, s52, s53")
    e(f"v_lshlrev_b32 v2, 10, {L}")
    e("v_add_u32 v2, s52, v2")
    e(f"v_cmp_gt_u32 vcc, 3, {L}")
    e(f"v_mov_b32 v7, {OOB:#x}")
    e("v_mov_b32 v141, 0")
    e("v_cndmask_b32 v1, v2, v1, vcc")
    e(f"v_cmp_eq_u32 vcc, 3, {L}")
    e("s_nop 1")
    e("v_cndmask_b32 v1, v1, v3, vcc")
    e(f"v_cmp_gt_u32 vcc, 12, {L}")
    e("s_nop 1")
    e("v_cndmask_b32 v140, v7, v1, vcc")
    srd(e, 24, 44, 256)
    e(f"s_mov_b32 s52, {FLG}")
    e(f"buffer_store_dword v141, v140, {WS}, s52 offen sc1")
    e("s_and_b32 s52, s2, 3")
    e("s_lshl_b32 s52, s52, 6")
    e("v_mov_b32 v1, 1")
    e("s_waitcnt vmcnt(0)")
    e("s_mov_b64 exec, 1")
    e("buffer_atomic_add v1, v141, s[24:27], s52 offen")
    e("s_mov_b64 exec, -1")
    e.label(".Lnoarrive")
    e(f"v_and_b32 v1, 15, {L}")
    e(f"v_lshrrev_b32 v2, 4, {L}")
    e(f"v_bfe_u32 v3, {L}, 1, 3")
    e("v_xor_b32 v3, v2, v3")
    e("s_lshl_b32 s52, s51, 6")
    e("v_add_u32 v4, s52, v1")
    e("v_lshlrev_b32 v4, 7, v4")
    e("v_lshl_add_u32 v4, v3, 4, v4")
    e(f"v_add_u32 v207, {XB}, v4")
    e("v_xor_b32 v222, 64, v207")
    e("s_and_b32 s52, s4, 1")
    e("s_lshl_b32 s52, s52, 2")
    e("s_mul_i32 s53, s50, 27")
    e("s_add_u32 s52, s52, s53")
    e("s_mul_i32 s53, s50, 3")
    for p in range(3):
        e(f"s_add_u32 s59, s53, {p}")
        e("s_cmp_ge_u32 s59, 4")
        e("s_cselect_b32 s60, 4, 0")
        e("s_cmp_ge_u32 s59, 2")
        e("s_cselect_b32 s61, 6, 2")
        e("s_cmp_eq_u32 s49, 0")
        e("s_cselect_b32 s60, s60, s61")
        e(f"s_add_u32 s{62+p}, s52, {9*p}")
        e(f"s_add_u32 s{62+p}, s{62+p}, s60")
    e("v_lshrrev_b32 v3, 2, v1")
    e("v_lshl_add_u32 v4, v2, 3, v3")
    e("v_lshlrev_b32 v4, 9, v4")
    e(f"v_bfe_u32 v5, {L}, 3, 2")
    e("v_lshlrev_b32 v5, 3, v5")
    e("v_and_b32 v6, 4, v1")
    e("v_and_b32 v7, 3, v1")
    e("v_lshrrev_b32 v8, 1, v7")
    e("v_lshl_add_u32 v8, v7, 1, v8")
    e("v_add_u32 v8, v8, v5")
    for tile in range(7):
        if tile < 6:
            e(f"v_add_u32 v9, s{62 + tile//2}, v8")
            if tile % 2:
                e("v_add_u32 v9, 1, v9")
        else:
            e("v_mov_b32 v9, s64")
            e("v_mov_b32 v3, s63")
            e("v_cmp_eq_u32 vcc, 1, v7")
            e("s_nop 1")
            e("v_cndmask_b32 v9, v9, v3, vcc")
            e("v_mov_b32 v3, s62")
            e("v_cmp_eq_u32 vcc, 0, v7")
            e("s_nop 1")
            e("v_cndmask_b32 v9, v9, v3, vcc")
            e("v_add3_u32 v9, v9, v5, 4")
        e("v_and_b32 v9, 63, v9")
        e("v_xor_b32 v9, v9, v6")
        e(f"v_lshl_add_u32 v{200+tile}, v9, 3, v4")
        if tile == 6 and not opt.get("x_dup"):
            e("v_cmp_eq_u32 vcc, 3, v7")
            e("v_mov_b32 v3, 0x40000")
            e("s_nop 0")
            e(f"v_cndmask_b32 v{200+tile}, v{200+tile}, v3, vcc")
        e(f"v_add_u32 v{215+tile}, {2*WSLOT}, v{200+tile}")
    e("v_lshrrev_b32 v3, 1, v2")
    e(f"s_mov_b32 s52, {HS}")
    e("v_mul_lo_u32 v3, v3, s52")
    e("v_and_b32 v4, 1, v2")
    e("v_lshl_add_u32 v5, v4, 9, v3")
    e("v_lshl_add_u32 v208, v1, 4, v5")
    e("v_lshl_add_u32 v5, v4, 4, v3")
    e("v_lshl_add_u32 v209, v1, 5, v5")
    e("s_mul_i32 s52, s49, 12")
    e("s_mul_i32 s53, s50, 6")
    e("s_add_u32 s54, s52, s53")
    e("s_lshl_b32 s55, s48, 1")
    e("s_add_u32 s55, s55, s51")
    e("s_lshl_b32 s56, s4, 3")
    e("v_lshl_add_u32 v3, v2, 1, s54")
    e("v_lshrrev_b32 v4, 3, v3")
    e("v_and_b32 v3, 7, v3")
    e("v_add_u32 v3, s56, v3")
    e(f"s_mov_b32 s52, {HS}")
    e("v_mul_lo_u32 v3, v3, s52")
    e(f"s_mul_i32 s57, s55, {QCH}")
    e(f"s_add_u32 s57, s57, {QOFF}")
    e(f"s_mul_i32 s58, s55, {CH}")
    e("v_lshrrev_b32 v5, 3, v1")
    e("v_mul_u32_u24 v5, 512, v5")
    e("v_add_u32 v5, s58, v5")
    e("v_mov_b32 v6, s57")
    e("v_cmp_eq_u32 vcc, 0, v4")
    e(f"v_mov_b32 v7, {f32(QSCALE)}")
    e("s_nop 0")
    e("v_cndmask_b32 v5, v5, v6, vcc")
    e("v_cndmask_b32 v212, 1.0, v7, vcc")
    e("v_add_u32 v5, v5, v3")
    e("v_lshl_add_u32 v5, v1, 4, v5")
    e("v_add_u32 v210, 2048, v5")
    e("v_lshlrev_b32 v6, 5, v1")
    e("v_add3_u32 v6, v6, v3, s58")
    e(f"v_add_u32 v211, {VX}, v6")
    e(f"v_mov_b32 v7, {OOB:#x}")
    e("v_cmp_eq_u32 vcc, 2, v4")
    e("s_nop 1")
    e("v_cndmask_b32 v210, v210, v7, vcc")
    e("v_cndmask_b32 v211, v7, v211, vcc")
    e("v_cmp_eq_u32 vcc, 3, v2")
    e("s_nop 1")
    e("v_cndmask_b32 v210, v210, v7, vcc")
    e("v_cndmask_b32 v211, v211, v7, vcc")

    F = [112, 156]

    def reads(stage, ks, fb):
        slot = stage % 3
        xr = [f"ds_read_b128 {vr(fb+4*tt,4)}, v{222 if ks else 207} offset:{slot*XSLOT + tt*2048}" for tt in range(4)]
        wr_ = []
        for tile in range(7):
            for r in range(2):
                a = (215 if slot == 2 else 200) + tile
                off = (WSLOT if slot == 1 else 0) + ks * 16384 + r * 2048
                wr_.append(f"ds_read_b64_tr_b16 {vr(fb+16+4*tile+2*r,2)}, v{a} offset:{off}")
        return xr[0:2] + wr_[0:2] + xr[2:4] + wr_[2:]

    def mfmas(fb, first):
        out = []
        for tile in range(7):
            for tt in range(4):
                acc = vr((tt * 7 + tile) * 4, 4)
                c = "0" if first else acc
                out.append(f"v_mfma_f32_16x16x32_bf16 {acc}, {vr(fb+16+4*tile,4)}, {vr(fb+4*tt,4)}, {c}")
        return out

    e("s_barrier")
    e.stamp(1)
    for r in reads(0, 0, F[0]):
        e(r)
    e("s_waitcnt lgkmcnt(0)")
    def mix(m, rd):
        for i, x in enumerate(m):
            e(x)
            if i < len(rd):
                e(rd[i])

    if pfd <= 8:
        prefetch(pfd)
    for ph in range(15):
        s, ks = divmod(ph, 2)
        mix(mfmas(F[ks], ph == 0), reads(s, 1, F[1]) if ks == 0 else reads(s + 1, 0, F[0]))
        e("s_waitcnt lgkmcnt(0)")
        if ks == 0 and s < 7:
            e("s_barrier")
            if s + 1 + pfd <= 8:
                prefetch(s + 1 + pfd)
    m = mfmas(F[1], False)
    mix(m[:14], [])
    e("s_barrier")
    mix(m[14:], reads(8, 0, F[0])[:14])
    for r in reads(8, 0, F[0])[14:]:
        e(r)
    e("s_waitcnt lgkmcnt(0)")
    m = mfmas(F[0], False)
    mix(m[:10], [])
    e("s_barrier")
    mix(m[10:], reads(8, 1, F[1]))
    e("s_waitcnt lgkmcnt(0)")
    last = mfmas(F[1], False)
    mix(last[:8], [])
    e.stamp(2)
    for p in range(3):
        e(f"s_add_u32 s52, s54, {2*p}")
        e("s_lshr_b32 s53, s52, 3")
        e("s_and_b32 s52, s52, 7")
        e("s_add_u32 s52, s52, s56")
        e(f"s_mul_i32 s52, s52, {HS}")
        e("s_cmp_eq_u32 s53, 0")
        e("s_cselect_b32 s59, s57, s58")
        e("s_add_u32 s60, s52, s59")
        e("s_cmp_eq_u32 s53, 2")
        e(f"s_cbranch_scc1 .Lqkv_ep_v{p}")
        e("s_cmp_eq_u32 s53, 0")
        e(f"s_cbranch_scc0 .Lqkv_ep_k{p}")
        e(f"s_mov_b32 s59, {f32(QSCALE)}")
        for kind in "qkv":
            if kind != "q":
                e.label(f".Lqkv_ep_{kind}{p}")
            if kind == "v":
                e(f"s_add_u32 s60, s60, {VM}")
            todo = list(last[8 + 8*p: 16 + 8*p])
            for tt in range(4):
                r = (tt * 7 + 2 * p) * 4
                d = 112 + (p % 2) * 16 + tt * 4 if p < 2 else 144 + (tt % 2) * 4 + (tt // 2) * 80
                ops = []
                if kind == "q":
                    ops += [f"v_mul_f32 v{r+j}, s59, v{r+j}" for j in range(8)]
                ops += [f"v_cvt_pk_bf16_f32 v{d+j}, v{r+2*j}, v{r+2*j+1}" for j in range(4)]
                for k, x in enumerate(ops):
                    if k % 2 == 0 and todo:
                        e(todo.pop(0))
                    e(x)
                if kind == "v":
                    e(f"buffer_store_dwordx4 {vr(d,4)}, v209, {WS}, s60 offen offset:{tt*512}")
                else:
                    e(f"buffer_store_dwordx4 {vr(d,4)}, v208, {WS}, s60 offen offset:{(tt//2)*1024 + (tt%2)*256}")
            assert not todo
            if kind != "v":
                e(f"s_branch .Lqkv_ep_n{p}")
        e.label(f".Lqkv_ep_n{p}")
    X = 160
    for tt in range(4):
        r = (tt * 7 + 6) * 4
        for j in range(4):
            e(f"v_mul_f32 v{r+j}, v212, v{r+j}")
        e(f"v_cvt_pk_bf16_f32 v{X+tt}, v{r}, v{r+1}")
        e(f"v_cvt_pk_bf16_f32 v{X+4+tt}, v{r+2}, v{r+3}")
    e(f"s_mov_b32 s59, {HS}")
    e("s_cmp_ge_u32 s54, 16")
    e("s_cbranch_scc1 .Lqkv_ex_v")
    e(f"buffer_store_dwordx4 {vr(X,4)}, v210, {WS}, 0 offen")
    e(f"buffer_store_dwordx4 {vr(X+4,4)}, v210, {WS}, s59 offen")
    e("s_cmp_ge_u32 s54, 12")
    e("s_cbranch_scc0 .Lp1_join")
    e.label(".Lqkv_ex_v")
    for k in range(8):
        e(f"v_mov_b32 v{X+8+2*k}, v{X+k}")
        e(f"v_mov_b32 v{X+9+2*k}, 0x3f80")
    for k in range(4):
        e(f"buffer_store_dwordx4 {vr(X+8+4*k,4)}, v211, {WS}, {'0' if k < 2 else 's59'} offen offset:{(k%2)*16}")
    e.label(".Lp1_join")
    e("s_waitcnt vmcnt(0)")
    e("s_barrier")
    e.stamp(3)
    e.label(".Lp1_done")


X_, Y_ = 0, 32
OA, OB = 64, 80
Q1A, Q1B, Q2A, Q2B = 96, 100, 104, 106
K1LO, K1HI, K2R = 108, 112, 116
IDX, AK1, AK2, AK20 = 118, 119, 120, 121
AV, AVI = 140, 144
VF = 124
WOM, WOE, GT = 152, 232, 242


def rdV(j, off):
    return [f"ds_read_b64_tr_b16 {vr(VF+4*j+2*r,2)}, v{AV+j} offset:{off + r*128}" for r in range(2)]


def pv(o, j, src):
    return f"v_smfmac_f32_32x32x32_bf16 {vr(o,16)}, {vr(VF+4*j,4)}, {vr(src+8*j,8)}, v{IDX}"


def dma_round(e, step=8192, off=0):
    if step:
        e(f"s_add_u32 m0, m0, {step}")
        e(f"s_add_u32 s53, s53, {step}")
    e(f"buffer_load_dwordx4 v{AK1}, {WS}, s53 offen offset:{off} sc1 lds")


def attn_unit(e, which, ci, first=False, side=()):
    if which == "A":
        cur, oth, o, op, q1, q2 = X_, Y_, OA, OB, Q1B, Q2B
    else:
        cur, oth, o, op, q1, q2 = Y_, X_, OB, OA, Q1A, Q2A
    c0, c1 = ci * CH, (ci + 1) * CH
    A = which == "A"
    wfirst = e.opt.get("wfirst", 1)

    def ex(a, b):
        for i in range(a, b + 1):
            e(f"v_exp_f32 v{cur+i}, v{cur+i}")

    def slot(rd, wait=None):
        if e.opt.get("x_halfv") and rd and "tr_b16" in rd and "offset:%d" % (c0 + 128) + "$" in rd + "$":
            rd = None
        if e.opt.get("x_halfv") and rd and "tr_b16" in rd and "offset:%d" % (c1 + 128) + "$" in rd + "$":
            rd = None
        if e.opt.get("x_nolds"):
            rd = None
        if wait is not None and wfirst:
            e(f"s_waitcnt lgkmcnt({wait})")
        if rd:
            e(rd)
        if wait is not None and not wfirst:
            e(f"s_waitcnt lgkmcnt({wait + 1})")

    side = list(side)

    def job():
        if side:
            side.pop(0)()

    ex(0, 1)
    if not first:
        e(pv(op, 3, oth))
    if A:
        slot(rdV(2, c0)[1], 1)
    else:
        job()
        job()
    ex(2, 4)
    xv = e.opt.get("xv", 0)
    if xv == 1:
        e(f"v_mfma_f32_32x32x8_bf16 {vr(oth,16)}, {vr(K2R,2)}, {vr(q2,2)}, 0")
        ex(5, 7)
        e(f"v_mfma_f32_32x32x8_bf16 {vr(oth+16,16)}, {vr(K2R,2)}, {vr(q2,2)}, 0")
    elif xv == 2:
        e(f"v_mfma_f32_16x16x4_4b_bf16 {vr(oth,16)}, {vr(K2R,2)}, {vr(q2,2)}, 0")
        ex(5, 7)
        e(f"v_mfma_f32_16x16x4_4b_bf16 {vr(oth+16,16)}, {vr(K2R,2)}, {vr(q2,2)}, 0")
    else:
        e(f"v_mfma_f32_32x32x4_2b_bf16 {vr(oth,32)}, {vr(K2R,2)}, {vr(q2,2)}, 0")
    pr = e.opt.get("prio", 8)
    if pr:
        u = (2 * ci + (0 if A else 1)) % (2 * pr)
        for at, lvl in ((0, 2), (2 * pr - e.opt.get("priol", 2), 0)):
            if u == at:
                lab = e.uid("pr")
                e("s_cmp_lt_u32 s3, 4")
                e(f"s_cbranch_scc0 {lab}")
                e(f"s_setprio {lvl}")
                e.label(lab)
    jp = e.opt.get("jobpos", 0)
    if jp == 0:
        job()
    ex(8 if xv in (1, 2) else 5, 12)
    e(pv(o, 0, cur))
    if jp == 2:
        job()
    slot(f"ds_read_b32 v{K2R}, v{AK2} offset:{c1}" if A else rdV(0, c1)[0])
    if jp == 1:
        job()
    ex(13, 17)
    e(pv(o, 1, cur))
    slot(rdV(3, c0)[0] if A else rdV(0, c1)[1], 1)
    ex(18, 20)
    e(f"v_mfma_f32_32x32x16_bf16 {vr(oth,16)}, {vr(K1LO,4)}, {vr(q1,4)}, {vr(oth,16)}")
    slot(rdV(3, c0)[1] if A else rdV(1, c1)[0])
    ex(21, 23)
    e(f"v_mfma_f32_32x32x16_bf16 {vr(oth+16,16)}, {vr(K1HI,4)}, {vr(q1,4)}, {vr(oth+16,16)}")
    slot(f"ds_read_b128 {vr(K1LO,4)}, v{AK1} offset:{c1}" if A else rdV(1, c1)[1])
    ex(24, 26)
    e(pv(o, 2, cur))
    if A:
        slot(f"ds_read_b128 {vr(K1HI,4)}, v{AK1} offset:{c1 + 1024}", 1)
    else:
        slot(rdV(2, c1)[0])
    ex(27, 29)
    xm = e.opt.get("x_mf", 0)
    if xm == 1:
        e(f"v_smfmac_f32_32x32x32_bf16 {vr(152,16)}, {vr(VF+4,4)}, {vr(cur+8,8)}, v{IDX}")
    if xm == 2:
        e(f"v_mfma_f32_32x32x16_bf16 {vr(152,16)}, {vr(K1HI,4)}, {vr(q1,4)}, {vr(168,16)}")
    if xm == 3:
        e(f"v_mfma_f32_32x32x16_bf16 {vr(152,16)}, {vr(K1HI,4)}, {vr(q1,4)}, 0")
    if xm == 4:
        e(f"v_mfma_f32_32x32x8_bf16 {vr(152,16)}, {vr(K2R,2)}, {vr(q2,2)}, 0")
    if xm == 5:
        e(f"v_mfma_f32_16x16x32_bf16 {vr(152,4)}, {vr(K1HI,4)}, {vr(q1,4)}, 0")
        e(f"v_mfma_f32_16x16x32_bf16 {vr(156,4)}, {vr(K1LO,4)}, {vr(q1,4)}, 0")
    if xm == 6:
        e(f"v_mfma_f32_16x16x4_4b_bf16 {vr(152,16)}, {vr(K2R,2)}, {vr(q2,2)}, 0")
    if xm == 7:
        e(f"v_mfma_f32_32x32x16_bf16 {vr(152,16)}, {vr(184,4)}, {vr(184,4)}, 0")
    for _ in range(e.opt.get("x_vnop", 0)):
        e("v_nop")
    for k in range(e.opt.get("x_vexp", 0)):
        e(f"v_exp_f32 v{T1}, v{cur+k}")
    ex(30, 31)
    assert not side


def max_tree(e, dst, src, n, init):
    i = 0
    if not init:
        e(f"v_max3_f32 v{dst}, v{src}, v{src+1}, v{src+2}")
        i = 3
    while i + 1 < n:
        e(f"v_max3_f32 v{dst}, v{src+i}, v{src+i+1}, v{dst}")
        i += 2
    if i < n:
        e(f"v_max_f32 v{dst}, v{src+i}, v{dst}")


def set_m(e, pairs, exact=True):
    for m, t, q in pairs:
        e(f"v_mov_b32 v{t}, v{m}")
    e("s_nop 1")
    for m, t, q in pairs:
        e(f"v_permlane32_swap_b32 v{m}, v{t}")
    e("s_nop 1")
    for m, t, q in pairs:
        e(f"v_max_f32 v{m}, v{m}, v{t}")
    if not exact:
        for m, t, q in pairs:
            e(f"v_cvt_pk_bf16_f32 v{q}, -v{m}, 0")
        return
    for m, t, q in pairs:
        e(f"v_cvt_pk_bf16_f32 v{t}, v{m}, v{m}")
    for m, t, q in pairs:
        e(f"v_lshlrev_b32 v{t}, 16, v{t}")
    for m, t, q in pairs:
        e(f"v_sub_f32 v{m}, v{m}, v{t}")
    for m, t, q in pairs:
        e(f"v_cvt_pk_bf16_f32 v{q}, -v{t}, -v{m}")


def attn_addr_init(e):
    e(f"v_lshlrev_b32 v{AK1}, 4, v{LANE}")
    e(f"v_mov_b32 v{AK2}, v{AK20}")
    for j in range(4):
        e(f"v_mov_b32 v{AV+j}, v{AVI+j}")


def attn_setup(e):
    L = f"v{LANE}"
    e("s_lshl_b32 s48, s4, 3")
    e("s_lshr_b32 s49, s5, 2")
    e("s_add_u32 s48, s48, s49")
    e("s_and_b32 s49, s5, 3")
    e("s_lshl_b32 s49, s49, 3")
    e("s_add_u32 s49, s49, s3")
    e(f"s_mul_i32 s50, s48, {HS}")
    e(f"s_mul_i32 s51, s49, {QCH}")
    e("s_add_u32 s51, s51, s50")
    e(f"s_add_u32 s51, s51, {QOFF}")
    e("s_lshl_b32 s52, s3, 10")
    e("s_add_u32 s53, s50, s52")
    e("s_mov_b32 m0, s52")
    e(f"v_and_b32 v2, 15, {L}")
    e(f"v_lshrrev_b32 v3, 4, {L}")
    e("v_lshrrev_b32 v4, 1, v3")
    e("v_lshlrev_b32 v4, 8, v4")
    e("v_lshrrev_b32 v5, 2, v2")
    e("v_lshl_add_u32 v4, v5, 5, v4")
    e("v_and_b32 v6, 1, v2")
    e("v_bfe_u32 v7, v2, 1, 1")
    e("v_lshl_add_u32 v6, v6, 1, v7")
    e("v_lshlrev_b32 v6, 3, v6")
    e(f"v_add_u32 v6, {VM}, v6")
    e("v_and_b32 v9, 3, v2")
    e("v_cmp_eq_u32 vcc, 0, v9")
    e("v_mov_b32 v9, 0x40000")
    e(f"v_mov_b32 v7, {VX}")
    e("v_and_b32 v8, 1, v3")
    e("v_cndmask_b32 v7, v9, v7, vcc")
    e("v_cmp_eq_u32 vcc, 0, v8")
    e("v_mov_b32 v9, 512")
    e("v_and_b32 v1, 7, v2")
    e("v_cndmask_b32 v6, v7, v6, vcc")
    e("v_cndmask_b32 v9, 8, v9, vcc")
    e(f"v_add_u32 v{AVI}, v4, v6")
    for j in range(1, 4):
        e(f"v_add_u32 v{AVI+j}, v{AVI+j-1}, v9")
    e("v_lshlrev_b32 v1, 4, v1")
    e("v_lshl_add_u32 v1, v3, 2, v1")
    e("v_lshrrev_b32 v5, 3, v2")
    e("v_mul_u32_u24 v5, 640, v5")
    e("v_add_u32 v1, 2048, v1")
    e(f"v_add_u32 v{AK20}, v1, v5")
    e("v_lshlrev_b32 v1, 2, v8")
    e(f"v_lshl_add_u32 v{T0}, v2, 4, v1")
    attn_addr_init(e)
    e(f"v_mov_b32 v{IDX}, 0xdddddddd")
    e(f"v_mov_b32 v{K2R+1}, 0x3f803f80")
    for i in range(32):
        e(f"v_mov_b32 v{OA+i}, 0")
    e("s_mov_b32 s55, 0")
    if e.opt.get("x_mf") == 7:
        for i in range(4):
            e(f"v_mov_b32 v{184+i}, 0")
    e("s_setprio 1")


def gen_attn(e):
    opt = e.opt
    L = f"v{LANE}"
    e("s_barrier")
    e.stamp(4)
    if opt.get("probe"):
        e(f"buffer_load_dwordx4 {vr(Q1A,4)}, v{AK1}, {WS}, s51 offen sc1")
        e("s_waitcnt vmcnt(0)")
        e.stamp(6)
        e(f"buffer_load_dword v{Q2A}, v{T0}, {WS}, s51 offen offset:2048 sc1")
        e("s_waitcnt vmcnt(0)")
        e.stamp(7)
        e(f"buffer_load_dwordx4 v{AK1}, {WS}, s53 offen sc1 lds")
        e("s_waitcnt vmcnt(0)")
        e.stamp(8)
        e(f"buffer_load_dwordx4 {vr(Q1B,4)}, v{AK1}, {WS}, s51 offen offset:1024 sc1")
        e("s_waitcnt vmcnt(0)")
        e.stamp(9)
        e.opt = dict(opt, stamp=0)
        e.final = opt["stamp"]
    e(f"buffer_load_dwordx4 {vr(Q1A,4)}, v{AK1}, {WS}, s51 offen sc1")
    e(f"buffer_load_dwordx4 v{AK1}, {WS}, s53 offen sc1 lds")
    e(f"buffer_load_dwordx4 {vr(Q1B,4)}, v{AK1}, {WS}, s51 offen offset:1024 sc1")
    dma_round(e)
    e(f"buffer_load_dword v{Q2A}, v{T0}, {WS}, s51 offen offset:2048 sc1")
    e(f"buffer_load_dword v{Q2B}, v{T0}, {WS}, s51 offen offset:2056 sc1")
    e("s_waitcnt vmcnt(0)")
    e("s_barrier")
    e.stamp(5)
    e(f"ds_read_b128 {vr(K1LO,4)}, v{AK1}")
    e(f"ds_read_b128 {vr(K1HI,4)}, v{AK1} offset:1024")
    e(f"ds_read_b32 v{K2R}, v{AK2}")
    for j in range(3):
        for r in rdV(j, 0):
            e(r)
    e("s_waitcnt lgkmcnt(8)")
    e(f"v_mfma_f32_32x32x16_bf16 {vr(X_,16)}, {vr(K1LO,4)}, {vr(Q1A,4)}, 0")
    e(f"v_mfma_f32_32x32x16_bf16 {vr(Y_,16)}, {vr(K1LO,4)}, {vr(Q1B,4)}, 0")
    e("s_waitcnt lgkmcnt(7)")
    e(f"v_mfma_f32_32x32x16_bf16 {vr(X_+16,16)}, {vr(K1HI,4)}, {vr(Q1A,4)}, 0")
    dma_round(e)
    e("s_mul_i32 s59, s3, 3072")
    e("s_add_u32 s59, s59, 8192")
    e("s_add_u32 m0, m0, s59")
    e("s_add_u32 s53, s53, s59")
    for k in range(2):
        dma_round(e, 0, 1024 * k)
    e("s_nop 0")
    if opt.get("x_nom"):
        e(f"v_mov_b32 v{Q2A+1}, 0")
        e(f"v_mov_b32 v{Q2B+1}, 0")
    else:
        nm = opt.get("mregs", 16)
        max_tree(e, Y_ + 16, X_, nm, False)
        max_tree(e, Y_ + 17, Y_, nm, False)
        set_m(e, [(Y_ + 16, Y_ + 18, Q2A + 1), (Y_ + 17, Y_ + 19, Q2B + 1)], exact=False)
    e("s_waitcnt lgkmcnt(0)")
    e("s_nop 0")
    e(f"v_mfma_f32_32x32x4_2b_bf16 {vr(X_,32)}, {vr(K2R,2)}, {vr(Q2A,2)}, {vr(X_,32)}")
    e("s_lshr_b32 s56, s5, 2")
    e("s_lshl_b32 s56, s56, 3")
    e("s_add_u32 s56, s56, s3")
    e("s_lshl_b32 s57, s56, 4")
    e("s_and_b32 s59, s5, 3")
    e("s_lshl_b32 s59, s59, 8")
    e("s_lshl_b32 s60, s4, 2")
    e("s_add_u32 s59, s59, s60")
    e("s_sub_u32 s59, s59, 128")
    e(f"v_lshl_add_u32 v246, {L}, 2, s57")
    e(f"v_lshl_add_u32 v247, {L}, 5, s59")
    e(f"v_cmp_gt_u32 vcc, 4, {L}")
    e(f"s_mov_b32 s57, {FW}")
    e(f"v_and_b32 v247, 0x3ff, v247")
    e("v_cndmask_b32 v246, v247, v246, vcc")
    e(f"s_mul_i32 s56, s56, {WSET}")
    e(f"s_add_u32 s24, s56, {WOP}")
    e("s_and_b32 s58, s3, 3" if opt.get("rrole", 2) else "s_lshr_b32 s58, s3, 1")
    e("s_lshl_b32 s58, s58, 6")
    e("s_lshl_b32 s59, s4, 10")
    e("s_add_u32 s58, s58, s59")
    e("s_and_b32 s59, s5, 3")
    e("s_lshl_b32 s59, s59, 8")
    e("s_add_u32 s58, s58, s59")
    e(f"s_add_u32 s25, s58, {GATE}")
    e(f"v_lshlrev_b32 v{T0}, 2, {L}")
    e(f"v_lshlrev_b32 v148, 4, {L}")
    e(f"v_lshlrev_b32 v149, 3, {L}")
    e(f"v_and_b32 v150, 60, v{T0}")
    e("v_add_u32 v151, 4096, v148")
    e(f"v_and_b32 v{T1}, 8, {L}")
    e(f"v_lshlrev_b32 v{T1}, 28, v{T1}")
    e(f"v_or_b32 v151, v151, v{T1}")
    wo_store(e)
    jobs = [(lambda k=k: dma_round(e, 32768 if k % 4 == 0 else 0, 1024 * (k % 4))) for k in range(2, 16)]
    if opt.get("x_nodma"):
        jobs = []
    for ci in range(8):
        if ci == 2:
            if not opt.get("x_nob1"):
                e("s_waitcnt vmcnt(6)")
                e("s_barrier")
            e("s_cmp_eq_u32 s3, 4")
            e("s_cbranch_scc0 .Lnofw")
            e("s_lshl_b32 s59, s2, 2")
            e(f"s_add_u32 s59, s59, {FW}")
            e("s_mov_b64 exec, 1")
            e(f"buffer_store_dword v{IDX}, v{T0}, {WS}, s59 offen sc1")
            e("s_mov_b64 exec, -1")
            e.label(".Lnofw")
        if ci == 7:
            if not opt.get("x_nob2"):
                e("s_waitcnt vmcnt(0)")
                e("s_barrier")
            e(f"buffer_load_dword v{T1}, v246, {WS}, s57 offen sc1")
        for w in "AB":
            n = 1 if w == "A" else 3
            side, jobs = jobs[:n], jobs[n:]
            attn_unit(e, w, ci, first=(ci == 0 and w == "A"), side=side)
    for a in (AK1, AK2, AV, AV + 1, AV + 2, AV + 3):
        e(f"v_add_u32 v{a}, {8*CH}, v{a}")
    e.stamp(6)
    e("s_lshl_b32 s21, s49, 10")
    fo_word(e, "s22", "s23")
    e("s_add_u32 s21, s21, s22")
    e(f"s_add_u32 s21, s21, {FO}")
    e("s_lshl_b32 s50, s4, 2")
    e("s_and_b32 s51, s5, 3")
    e("s_add_u32 s50, s50, s51")
    e("s_lshr_b32 s51, s5, 2")
    e("s_lshl_b32 s20, s50, 10")
    e("s_lshl_b32 s22, s3, 7")
    e("s_add_u32 s20, s20, s22")
    e(f"s_add_u32 s20, s20, {FO}")
    e(f"v_and_b32 v250, 7, {L}")
    e("v_lshlrev_b32 v250, 2, v250")
    if opt.get("wb"):
        e("s_cmp_eq_u32 s3, 7")
        e("s_cbranch_scc0 .Lnowb")
        if opt["wb"] == 2:
            e("s_cmp_eq_u32 s5, 0")
            e("s_cbranch_scc0 .Lnowb")
        e("buffer_wbl2 sc1")
        e.label(".Lnowb")
    jobs = []

    def wo_load(k):
        if k < 20:
            r, tile = divmod(k, 5)
            if tile == 0:
                e(f"s_add_u32 s59, s4, {r + 1}")
                e("s_and_b32 s59, s59, 3")
                e("s_mul_i32 s59, s59, 5120")
                e("s_add_u32 s26, s59, s24")
            a_, off = (148, tile * 1024) if tile < 4 else (151, 0)
            e(f"buffer_load_dwordx4 {vr(WOM+4*k,4)}, v{a_}, {WS}, s26 offen offset:{off} sc1")
        elif k < 25:
            if k == 20:
                e("s_add_u32 s26, s24, 20480")
            e(f"buffer_load_dwordx2 {vr(WOE+2*(k-20),2)}, v149, {WS}, s26 offen offset:{(k-20)*512} sc1")
        else:
            if k == 26:
                e("s_add_u32 s26, s25, 8192")
            e(f"buffer_load_dword v{GT+k-25}, v150, {WS}, {'s25' if k == 25 else 's26'} offen sc1")

    jobs = [(lambda k=k: wo_load(k)) for k in range(27)]
    na, nb = opt.get("wo_a", 27), opt.get("wo_b", 27)
    e.late = (jobs[na:nb], jobs[nb:])
    jobs = jobs[:na]
    poll(e, T1, 246, WS, "s57", f"v_cmp_ne_u32 vcc, 0, v{T1}", 0xfff, first_loaded=True)
    for ci in range(8):
        for w in "AB":
            n = 1 if w == "A" else 3
            side, jobs = jobs[:n], jobs[n:]
            attn_unit(e, w, ci, side=side)
    for a in (AK1, AK2, AV, AV + 1, AV + 2, AV + 3):
        e(f"v_add_u32 v{a}, {8*CH}, v{a}")
    e("s_mov_b32 s54, 2")
    if opt.get("solo"):
        e.stamp(12)
        e("s_barrier")
        e.stamp(6)
        e("s_mov_b32 s55, 1")
        if opt["solo"] == 1:
            e("s_cmp_ge_u32 s3, 4")
            e("s_cbranch_scc1 .Lattn_done")
    e.raw(".p2align 6")
    e.label(".Lattn_loop")
    for ci in range(8):
        attn_unit(e, "A", ci)
        attn_unit(e, "B", ci)
    for a in (AK1, AK2, AV, AV + 1, AV + 2, AV + 3):
        e(f"v_add_u32 v{a}, {8*CH}, v{a}")
    e("s_sub_u32 s54, s54, 1")
    e("s_cmp_lg_u32 s54, 0")
    e("s_cbranch_scc1 .Lattn_loop")
    e.label(".Lattn_done")
    e(pv(OB, 3, Y_))
    e(f"buffer_load_dword v254, v250, {WS}, s20 offen sc1")
    e("s_waitcnt lgkmcnt(0)")
    e.stamp(7)
    e(f"v_mov_b32 v4, v{OA+10}")
    e(f"v_lshlrev_b32 v2, 4, {L}")
    e(f"v_lshlrev_b32 v3, 2, {L}")
    e(f"v_permlane32_swap_b32 v{OA+10}, v4")
    e("s_lshl_b32 s56, s48, 16")
    e("s_lshl_b32 s57, s49, 11")
    e("s_add_u32 s56, s56, s57")
    e(f"s_add_u32 s56, s56, {O1}")
    e(f"v_rcp_f32 v0, v{OA+10}")
    e("s_lshl_b32 s57, s48, 13")
    e("s_lshl_b32 s58, s49, 8")
    e("s_add_u32 s57, s57, s58")
    e(f"s_add_u32 s57, s57, {O2}")
    e(f"v_mov_b32 v4, v{OB+10}")
    for i in range(10):
        e(f"v_mul_f32 v{OA+i}, v0, v{OA+i}")
    e(f"v_permlane32_swap_b32 v{OB+10}, v4")
    for j in range(5):
        e(f"v_cvt_pk_bf16_f32 v{8+j}, v{OA+2*j}, v{OA+2*j+1}")
    e(f"v_rcp_f32 v1, v{OB+10}")
    e(f"buffer_store_dwordx4 v[8:11], v2, {WS}, s56 offen sc1")
    for i in range(10):
        e(f"v_mul_f32 v{OB+i}, v1, v{OB+i}")
    for j in range(5):
        e(f"v_cvt_pk_bf16_f32 v{16+j}, v{OB+2*j}, v{OB+2*j+1}")
    e(f"buffer_store_dwordx4 v[16:19], v2, {WS}, s56 offen offset:1024 sc1")
    e("v_mov_b32 v0, 0")
    e("v_permlane32_swap_b32 v12, v20")
    e("v_mov_b32 v1, 0")
    e(f"buffer_store_dword v12, v3, {WS}, s57 offen sc1")
    for i in range(10):
        e(f"v_fmac_f32 v0, 0, v{OA+i}")
        e(f"v_fmac_f32 v1, 0, v{OB+i}")
    e(f"v_add_f32 v0, v0, v{OA+10}")
    e(f"v_add_f32 v1, v1, v{OB+10}")
    e(f"s_mov_b32 s56, {f32(2.0**60)}")
    e(f"s_mov_b32 s57, {f32(2.0**-60)}")
    e("v_cmp_nge_f32 s[58:59], s56, v0")
    e("v_cmp_nle_f32 s[60:61], s57, v0")
    e("v_cmp_nge_f32 s[62:63], s56, v1")
    e("v_cmp_nle_f32 s[64:65], s57, v1")
    if opt.get("force_fallback"):
        e("s_mov_b64 s[58:59], -1")
    e("s_or_b64 s[58:59], s[58:59], s[60:61]")
    e("s_or_b64 s[62:63], s[62:63], s[64:65]")
    e("s_or_b64 s[58:59], s[58:59], s[62:63]")
    e("s_cselect_b32 s56, 1, 0")
    e("s_cmp_gt_u32 s56, s55")
    if not opt.get("nofb"):
        e("s_cbranch_scc1 .Lattn_fallback")


def gen_fallback(e):
    e.label(".Lattn_fallback")
    e("s_waitcnt vmcnt(0)")
    e("s_mov_b32 s55, 1")
    attn_addr_init(e)
    MA, MB = OA, OA + 1
    e(f"v_mov_b32 v{MA}, 0xff800000")
    e(f"v_mov_b32 v{MB}, 0xff800000")
    e(f"v_mov_b32 v{Q2A+1}, 0")
    e(f"v_mov_b32 v{Q2B+1}, 0")
    e("s_mov_b32 s54, 32")
    e.label(".Lattn_maxloop")
    e(f"ds_read_b128 {vr(K1LO,4)}, v{AK1}")
    e(f"ds_read_b128 {vr(K1HI,4)}, v{AK1} offset:1024")
    e(f"ds_read_b32 v{K2R}, v{AK2}")
    e("s_waitcnt lgkmcnt(0)")
    for buf, q1 in ((X_, Q1A), (Y_, Q1B)):
        e(f"v_mfma_f32_32x32x16_bf16 {vr(buf,16)}, {vr(K1LO,4)}, {vr(q1,4)}, 0")
        e(f"v_mfma_f32_32x32x16_bf16 {vr(buf+16,16)}, {vr(K1HI,4)}, {vr(q1,4)}, 0")
    e("s_nop 10")
    e(f"v_mfma_f32_32x32x4_2b_bf16 {vr(X_,32)}, {vr(K2R,2)}, {vr(Q2A,2)}, {vr(X_,32)}")
    e(f"v_mfma_f32_32x32x4_2b_bf16 {vr(Y_,32)}, {vr(K2R,2)}, {vr(Q2B,2)}, {vr(Y_,32)}")
    e("s_nop 15")
    e("s_nop 4")
    max_tree(e, MA, X_, 32, True)
    max_tree(e, MB, Y_, 32, True)
    e(f"v_add_u32 v{AK1}, {CH}, v{AK1}")
    e(f"v_add_u32 v{AK2}, {CH}, v{AK2}")
    e("s_sub_u32 s54, s54, 1")
    e("s_cmp_lg_u32 s54, 0")
    e("s_cbranch_scc1 .Lattn_maxloop")
    set_m(e, [(MA, OA + 2, Q2A + 1), (MB, OA + 3, Q2B + 1)])
    attn_addr_init(e)
    e(f"ds_read_b128 {vr(K1LO,4)}, v{AK1}")
    e(f"ds_read_b128 {vr(K1HI,4)}, v{AK1} offset:1024")
    e(f"ds_read_b32 v{K2R}, v{AK2}")
    for j in range(3):
        for r in rdV(j, 0):
            e(r)
    for i in range(32):
        e(f"v_mov_b32 v{OA+i}, 0")
    for i in range(8):
        e(f"v_mov_b32 v{Y_+24+i}, 0")
    e("s_waitcnt lgkmcnt(0)")
    e(f"v_mfma_f32_32x32x16_bf16 {vr(X_,16)}, {vr(K1LO,4)}, {vr(Q1A,4)}, 0")
    e(f"v_mfma_f32_32x32x16_bf16 {vr(X_+16,16)}, {vr(K1HI,4)}, {vr(Q1A,4)}, 0")
    e("s_nop 10")
    e(f"v_mfma_f32_32x32x4_2b_bf16 {vr(X_,32)}, {vr(K2R,2)}, {vr(Q2A,2)}, {vr(X_,32)}")
    e("s_nop 15")
    e("s_nop 4")
    e("s_mov_b32 s54, 4")
    e("s_branch .Lattn_loop")


def gen_out(e):
    L = f"v{LANE}"
    OFS, OE = (96, 112, 128, 80), 144
    nap, pdepth = e.opt.get("nap", 0), e.opt.get("pdepth", 0)
    e(f"v_and_b32 v246, 15, {L}")
    e(f"v_lshrrev_b32 v247, 4, {L}")
    e("v_lshrrev_b32 v3, 1, v247")
    e("v_lshlrev_b32 v3, 16, v3")
    e("v_and_b32 v4, 1, v247")
    e("v_lshl_add_u32 v3, v4, 9, v3")
    e("v_lshl_add_u32 v248, v246, 4, v3")
    e("s_lshr_b32 s61, s3, 2")
    e("s_lshl_b32 s61, s61, 4")
    e("s_and_b32 s62, s3, 3")
    e("s_add_u32 s61, s61, s62")
    e("s_lshl_b32 s58, s61, 17")
    e("s_lshl_b32 s59, s50, 11")
    e("s_add_u32 s58, s58, s59")
    e(f"s_add_u32 s58, s58, {O1}")
    for r in range(4):
        e(f"s_add_u32 s{62+r}, s4, {r + 1}")
        e(f"s_and_b32 s{62+r}, s{62+r}, 3")
        e(f"s_lshl_b32 s{62+r}, s{62+r}, 19")
        e(f"s_add_u32 s{62+r}, s{62+r}, s58")
    e("s_and_b32 s66, s4, 3")
    e("s_lshl_b32 s66, s66, 1")
    e("s_lshl_b32 s67, 3, s66")
    e("s_andn2_b32 s67, 0xff, s67")

    def o_loads(r):
        for tt in range(4):
            e(f"buffer_load_dwordx4 {vr(OFS[r]+4*tt,4)}, v248, {WS}, s{62+r} offen offset:{(tt//2)*1024+(tt%2)*256} sc1")

    def o_mfma(st, first=False):
        for tt in range(4):
            for tile in range(5):
                acc = vr((tt * 5 + tile) * 4, 4)
                e(f"v_mfma_f32_16x16x32_bf16 {acc}, {vr(WOM+20*st+4*tile,4)}, {vr(OFS[st]+4*tt,4)}, {'0' if first else acc}")

    def publish(pending):
        e("v_lshlrev_b32 v3, 16, v247")
        e("v_lshl_add_u32 v249, v246, 2, v3")
        e("v_mov_b32 v4, 0")
        e("s_lshl_b32 s59, s61, 14")
        e("s_lshl_b32 s60, s50, 8")
        e("s_add_u32 s59, s59, s60")
        e(f"s_add_u32 s59, s59, {O2}")
        e("s_add_u32 s61, s59, 8192")
        e(f"s_waitcnt vmcnt({pending})")
        e("s_mov_b64 exec, 1")
        e(f"buffer_store_dword v250, v4, {WS}, s21 offen sc1" if False else f"buffer_store_dword v{LANE + 1}, v4, {WS}, s21 offen sc1")
        e("s_mov_b64 exec, -1")
        e.stamp(8)
        e("s_barrier")
        e.stamp(9)

    def extra_loads():
        for tt in range(4):
            e(f"buffer_load_dword v{OE+2*tt}, v249, {WS}, s59 offen offset:{tt*64} sc1")
            e(f"buffer_load_dword v{OE+2*tt+1}, v249, {WS}, s61 offen offset:{tt*64} sc1")

    e(f"v_mov_b32 v{LANE + 1}, 1")
    e("s_waitcnt vmcnt(3)")
    e("v_cmp_ne_u32 vcc, 0, v254")
    e("s_and_b32 s68, vcc_lo, s67")
    e("s_cmp_eq_u32 s68, s67")
    e("s_branch .Lout_dyn" if e.opt.get("noearly") else "s_cbranch_scc0 .Lout_dyn")
    o_loads(0)
    o_loads(1)
    publish(8)
    e("s_waitcnt vmcnt(5)")
    e("s_branch .Lout_go")
    e.label(".Lout_dyn")
    publish(0)
    poll(e, 254, 250, WS, "s20", "v_cmp_ne_u32 vcc, 0, v254", "s67", nap=nap, depth=pdepth)
    o_loads(0)
    o_loads(1)
    e("s_waitcnt vmcnt(4)")
    e.label(".Lout_go")
    e.stamp(10)
    o_loads(2)
    e(f"buffer_load_dword v254, v250, {WS}, s20 offen sc1")
    o_mfma(0, True)
    e("s_waitcnt vmcnt(5)")
    o_mfma(1)
    poll(e, 254, 250, WS, "s20", "v_cmp_ne_u32 vcc, 0, v254", 0xff, first_loaded=True, nap=nap, depth=pdepth)
    o_loads(3)
    extra_loads()
    o_mfma(2)
    e("s_waitcnt vmcnt(8)")
    o_mfma(3)
    e.label(".Lout_extra")
    e("s_mul_i32 s58, s3, 18432")
    e(f"v_lshl_add_u32 v244, {L}, 4, s58")
    e("s_and_b32 s58, s3, 3" if e.opt.get("rrole", 2) else "s_lshr_b32 s58, s3, 1")
    e("s_mul_i32 s59, s58, 4608")
    e("s_lshr_b32 s60, s3, 2" if e.opt.get("rrole", 2) else "s_and_b32 s60, s3, 1")
    if e.opt.get("rrole", 2) == 2:
        e("s_xor_b32 s60, s60, 1")
    e("s_lshl_b32 s61, s60, 11")
    e("s_add_u32 s59, s59, s61")
    e(f"v_lshl_add_u32 v245, {L}, 4, s59")
    e(f"v_add_u32 v250, {3*18432}, v245")
    e(f"v_add_u32 v251, {6*18432}, v245")
    e(f"v_cmp_gt_u32 vcc, 32, {L}")
    e("v_mov_b32 v253, 0x40000")
    e("s_nop 0")
    e("v_cndmask_b32 v253, v253, v244, vcc")
    e("s_waitcnt vmcnt(0)")
    pend = []
    for tt in range(4):
        for tile in range(5):
            acc = vr((tt * 5 + tile) * 4, 4)
            e(f"v_mfma_f32_16x16x16_bf16 {acc}, {vr(WOE+2*tile,2)}, {vr(OE+2*tt,2)}, {acc}")
            pend.append(f"ds_write_b128 v{244 if tile < 4 else 253}, {acc} offset:{tt*4608 + tile*1024}")
            if len(pend) > 8:
                e(pend.pop(0))
    e.stamp(11)
    e("s_nop 3")
    for x in pend:
        e(x)
    srd(e, 20, 42, 2048 * 1152)
    e("s_lshl_b32 s59, s50, 6")
    e("s_lshl_b32 s58, s58, 4")
    e("s_add_u32 s59, s59, s58")
    e("v_add_u32 v84, s59, v246")
    e("v_mul_u32_u24 v84, 1152, v84")
    e("v_lshl_add_u32 v85, v247, 3, v84")
    e("v_lshl_add_u32 v84, v247, 4, v84")
    e("s_mul_i32 s59, s51, 144")
    e("s_lshl_b32 s61, s60, 6")
    e("s_add_u32 s61, s61, s59")
    e("s_waitcnt lgkmcnt(0)")
    e("s_barrier")
    e.stamp(12)

    def rd(dst, src, off):
        a, o = (245, 250, 251)[src // 3], (src % 3) * 18432 + off
        e(f"ds_read_b128 {vr(dst,4)}, v{a} offset:{o}")

    def tree(b):
        for step in (1, 2):
            for k in range(0, 8, 2 * step):
                for h in range(2):
                    e(f"v_pk_add_f32 {vr(b+4*k+2*h,2)}, {vr(b+4*k+2*h,2)}, {vr(b+4*(k+step)+2*h,2)}")
        for j in range(4):
            e(f"v_mul_f32 v{b+j}, v{GT}, v{b+j}")
        for j in range(4):
            e(f"v_fmac_f32 v{b+j}, v{GT+1}, v{b+16+j}")

    for t in range(2):
        for src in range(8):
            rd(t * 32 + 4 * src, src, t * 1024)
    e("s_waitcnt lgkmcnt(8)")
    tree(0)
    e("v_cvt_pk_bf16_f32 v88, v0, v1")
    e("v_cvt_pk_bf16_f32 v89, v2, v3")
    e("s_cmp_eq_u32 s60, 0")
    e("s_cbranch_scc1 .Lout_half0")
    for src in range(8):
        rd(96 + 4 * src, src, 2048)
    e("s_waitcnt lgkmcnt(8)")
    tree(32)
    e("v_cvt_pk_bf16_f32 v90, v32, v33")
    e("v_cvt_pk_bf16_f32 v91, v34, v35")
    e(f"buffer_store_dwordx4 v[88:91], v84, s[20:23], s61 offen{['', ' nt', ' sc1', ' sc0 sc1'][e.opt.get('ont', 0)]}")
    e("s_waitcnt lgkmcnt(0)")
    tree(96)
    e("v_cvt_pk_bf16_f32 v92, v96, v97")
    e("v_cvt_pk_bf16_f32 v93, v98, v99")
    e("s_mov_b32 exec_hi, 0")
    e(f"buffer_store_dwordx2 v[92:93], v85, s[20:23], s59 offen offset:128{['', ' nt', ' sc1', ' sc0 sc1'][e.opt.get('ont', 0)]}")
    e("s_mov_b32 exec_hi, -1")
    e("s_branch .Lout_fin")
    e.label(".Lout_half0")
    e("s_waitcnt lgkmcnt(0)")
    tree(32)
    e("v_cvt_pk_bf16_f32 v90, v32, v33")
    e("v_cvt_pk_bf16_f32 v91, v34, v35")
    e(f"buffer_store_dwordx4 v[88:91], v84, s[20:23], s61 offen{['', ' nt', ' sc1', ' sc0 sc1'][e.opt.get('ont', 0)]}")
    e.label(".Lout_fin")
    if "echoA" in e.opt:
        a, b = 72 + 2 * e.opt["echoA"], 72 + 2 * e.opt["echoB"]
        e("s_waitcnt vmcnt(0)")
        e.stamp(13)
        e(f"s_sub_u32 s60, s{b}, s{a}")
        e("s_add_u32 s60, s60, s98")
        e.label(".Lecho")
        e("s_memrealtime s[62:63]")
        e("s_waitcnt lgkmcnt(0)")
        e("s_sub_u32 s61, s62, s60")
        e("s_cmp_lt_i32 s61, 0")
        e("s_cbranch_scc1 .Lecho")
        e("s_endpgm")
    if getattr(e, "final", 0):
        e.opt = dict(e.opt, stamp=e.final)
    if e.opt.get("stamp"):
        e("s_waitcnt vmcnt(0)")
        e.stamp(13)
        e("s_lshl_b32 s68, s2, 3")
        e("s_add_u32 s68, s68, s3")
        e("s_lshl_b32 s68, s68, 7")
        e(f"s_add_u32 s68, s68, {STAMP}")
        e("s_mov_b64 exec, 1")
        e("v_mov_b32 v0, 0")
        for k in range(7):
            for j in range(4):
                e(f"v_mov_b32 v{4+j}, s{72+4*k+j}")
            e(f"buffer_store_dwordx4 v[4:7], v0, {WS}, s68 offen offset:{16*k}")
            e("s_nop 1")


HEAD = """; Kernarg layout for this problem (80 bytes, ptrs only, base s[0:1]):
"""


DOC = """;
"""


def generate(opt=None):
    opt = opt or {}
    e = E(opt)
    n = NAME + "_kernel"
    e.raw(HEAD.rstrip())
    lst = opt.get("aslist", 0)
    if lst in (2, 4):
        e.raw(f"; @launch kernel=nop_kernel grid=(256,1,1) block=({256 if lst == 2 else 512},1,1) lds={0 if lst == 2 else LDS_BYTES}")
    if lst:
        e.raw(f"; @launch kernel={n} grid=(256,1,1) block=(512,1,1) lds={LDS_BYTES}")
    else:
        e.raw(f"; @launch grid=(256,1,1) block=(512,1,1) lds={LDS_BYTES}")
    if lst in (3, 5):
        e.raw(f"; @launch kernel=nop_kernel grid=(256,1,1) block=({256 if lst == 3 else 512},1,1) lds={0 if lst == 3 else LDS_BYTES}")
    e.raw(DOC.rstrip())
    e.raw('.amdgcn_target "amdgcn-amd-amdhsa--gfx950"')
    if lst > 1:
        e.raw(".text\n.globl nop_kernel\n.p2align 8\n.type nop_kernel,@function\nnop_kernel:\n    s_endpgm")
        e.raw('.section .rodata,"a"\n.p2align 6\n.amdhsa_kernel nop_kernel')
        e.raw(f"  .amdhsa_next_free_vgpr {8 if lst < 4 else 256}\n  .amdhsa_next_free_sgpr 16\n  .amdhsa_accum_offset {8 if lst < 4 else 256}")
        e.raw("  .amdhsa_group_segment_fixed_size 0\n  .amdhsa_kernarg_size 80\n  .amdhsa_user_sgpr_count 2\n  .amdhsa_user_sgpr_kernarg_segment_ptr 1\n  .amdhsa_system_sgpr_workgroup_id_x 1\n.end_amdhsa_kernel")
    e.raw(".text")
    e.raw(f".globl {n}")
    e.raw(".p2align 8")
    e.raw(f".type {n},@function")
    e.label(n)
    e("s_cmp_ge_u32 s2, 256")
    e("s_cbranch_scc1 .Lend")
    e.stamp(0)
    e("s_load_dwordx16 s[28:43], s[0:1], 0")
    e("s_load_dwordx4 s[44:47], s[0:1], 64")
    e("v_lshrrev_b32 v1, 6, v0")
    e(f"v_and_b32 v{LANE}, 63, v0")
    e("v_readfirstlane_b32 s3, v1")
    e("s_and_b32 s4, s2, 7")
    e("s_lshr_b32 s5, s2, 3")
    e("s_getreg_b32 s6, hwreg(HW_REG_XCC_ID, 0, 4)")
    e("s_add_u32 s6, s6, 1")
    e("s_lshr_b32 s48, s5, 1")
    e("s_and_b32 s49, s5, 1")
    e("s_cmp_ge_u32 s3, 4")
    e("s_cbranch_scc0 .Lconsumer")
    gen_loader(e)
    e.label(".Lconsumer")
    gen_consumer(e)
    attn_setup(e)
    e.label(".Lp2_join")
    gen_attn(e)
    gen_out(e)
    e.label(".Lend")
    e("s_endpgm")
    gen_fallback(e)
    e.raw('.section .rodata,"a"')
    e.raw(".p2align 6")
    e.raw(f".amdhsa_kernel {n}")
    e.raw("  .amdhsa_next_free_vgpr 256")
    e.raw("  .amdhsa_next_free_sgpr 100")
    e.raw("  .amdhsa_accum_offset 256")
    e.raw("  .amdhsa_group_segment_fixed_size 0")
    e.raw("  .amdhsa_kernarg_size 80")
    e.raw("  .amdhsa_user_sgpr_count 2")
    e.raw("  .amdhsa_user_sgpr_kernarg_segment_ptr 1")
    e.raw("  .amdhsa_system_sgpr_workgroup_id_x 1")
    e.raw(".end_amdhsa_kernel")
    return e.text()


if __name__ == "__main__":
    out = f"cdna_kernels/{NAME}.s"
    opt = {}
    for a in sys.argv[1:]:
        if a.startswith("-o="):
            out = a[3:]
        else:
            k, v = a.split("=")
            opt[k] = tuple(int(x) for x in v.split(",")) if k == "keep" else int(v)
    open(out, "w").write(generate(opt))
    print("wrote", out)
```

```python
import math, struct, sys

NAME = "gated_mix__softmax_full_mha__softmax_full_mha__prompt"

CH = 4864
VX, VM = 2176, 2816
KVSZ = 32 * CH
QCH = 2304
QOFF = KVSZ
HS = KVSZ + 32 * QCH
GATE = 64 * HS
FLG = GATE + 16384
F1L, F1G, F2, FW, FO = FLG, FLG + 1024, FLG + 2048, FLG + 3072, FLG + 4096
O1 = 15 * 1024 * 1024
O2 = O1 + 64 * 65536
WOP = O2 + 64 * 8192
WSET = 23040
WS_BYTES = 268435456
STAMP = 32 * 1024 * 1024
OOB = 0x80000000
SPIN = 3000000

QSCALE = (18 ** -0.5) * math.log2(math.e)
WSLOT, XSLOT, XB = 32768, 16384, 98304
LDS_BYTES = KVSZ + CH

LANE, AV0, T0, T1 = 252, 253, 254, 255
WG = 220
GX = 152
PIECE = 21
WS = "s[8:11]"


def f32(x):
    return "0x%08x" % struct.unpack("<I", struct.pack("<f", x))[0]


class E:
    def __init__(s, opt):
        s.l = []
        s.opt = opt
        s.n = 0

    def __call__(s, x):
        s.l.append("    " + x)

    def label(s, x):
        s.l.append(x + ":")

    def raw(s, x):
        s.l.append(x)

    def uid(s, p):
        s.n += 1
        return f".L{p}{s.n}"

    def stamp(s, slot):
        m = s.opt.get("stamp")
        if m == 3:
            if slot not in (0, 13) and slot not in s.opt.get("keep", ()):
                return
            m = 1
        if m:
            b = 72 + 2 * slot
            s(f"{'s_memrealtime' if m == 1 else 's_memtime'} s[{b}:{b+1}]")
            s("s_waitcnt lgkmcnt(0)")

    def text(s):
        return "\n".join(s.l) + "\n"


def vr(b, n):
    return f"v[{b}:{b+n-1}]" if n > 1 else f"v{b}"


def srd(e, d, ptr, nbytes):
    e(f"s_mov_b32 s{d}, s{ptr}")
    e(f"s_mov_b32 s{d+1}, s{ptr+1}")
    e(f"s_mov_b32 s{d+2}, {nbytes}")
    e(f"s_mov_b32 s{d+3}, 0x00020000")


def poll(e, vdst, vaddr, rsrc, soff, cmp, mask, first_loaded=False, nap=0, depth=0):
    top, done, ld = e.uid("poll"), e.uid("polld"), e.uid("polll")
    e(f"s_mov_b32 s70, {SPIN}")
    if isinstance(mask, str):
        e(f"s_mov_b32 s68, {mask}")
        e("s_mov_b32 s69, 0")
    else:
        e(f"s_mov_b32 s68, {mask & 0xffffffff:#x}")
        e(f"s_mov_b32 s69, {mask >> 32:#x}")
    if depth:
        if not first_loaded:
            e(f"buffer_load_dword v{vdst}, v{vaddr}, {rsrc}, {soff} offen sc1")
        e("s_waitcnt vmcnt(0)")
        e(cmp)
        e("s_and_b64 vcc, vcc, s[68:69]")
        e("s_cmp_eq_u64 vcc, s[68:69]")
        e(f"s_cbranch_scc1 {done}")
        for _ in range(depth):
            e(f"buffer_load_dword v{vdst}, v{vaddr}, {rsrc}, {soff} offen sc1")
            if nap:
                e(f"s_sleep {nap}")
    elif first_loaded:
        e(f"s_branch {ld}")
    e.label(top)
    e(f"buffer_load_dword v{vdst}, v{vaddr}, {rsrc}, {soff} offen sc1")
    if first_loaded and not depth:
        e.label(ld)
    e(f"s_waitcnt vmcnt({depth})")
    e(cmp)
    e("s_and_b64 vcc, vcc, s[68:69]")
    e("s_cmp_eq_u64 vcc, s[68:69]")
    e(f"s_cbranch_scc1 {done}")
    if nap:
        e(f"s_sleep {nap}")
    e("s_sub_u32 s70, s70, 1")
    e("s_cmp_lg_u32 s70, 0")
    e(f"s_cbranch_scc1 {top}")
    e.label(done)


def wo_job_addr(e, dst, s_tile, s_row, is_extra_sel, s_valid):
    e(f"s_lshr_b32 s60, {s_tile}, 1")
    e("s_lshl_b32 s60, s60, 5")
    e(f"s_and_b32 s61, {s_tile}, 1")
    e("s_lshl_b32 s61, s61, 2")
    e("s_add_u32 s60, s60, s61")
    e("s_add_u32 s60, s60, s58")
    e(f"s_cmp_eq_u32 {s_tile}, 4")
    e("s_cselect_b64 vcc, -1, 0")
    e("s_cselect_b32 s61, 8, 16")
    e(f"s_min_u32 s61, s61, {s_valid}")
    e("v_cndmask_b32 v4, v3, v1, vcc")
    e("v_add_u32 v4, s60, v4")
    e(f"v_cndmask_b32 v5, v6, v7, {is_extra_sel}")
    e(f"v_add_u32 v5, {s_row}, v5")
    e("v_mul_u32_u24 v5, 1152, v5")
    e("v_lshl_add_u32 v5, v4, 1, v5")
    e("v_cmp_gt_u32 vcc, s61, v1")
    e(f"v_mov_b32 v4, {OOB:#x}")
    e("s_nop 0")
    e(f"v_cndmask_b32 v{dst}, v4, v5, vcc")


def w_prefetch_addr(e, dst):
    L = f"v{LANE}"
    e("s_mul_i32 s52, s5, 2")
    e(f"v_mul_u32_u24 v2, 57, {L}")
    e("v_lshrrev_b32 v2, 9, v2")
    e("v_mul_u32_u24 v3, 9, v2")
    e(f"v_sub_u32 v3, {L}, v3")
    e("v_add_u32 v2, s52, v2")
    e("v_mul_u32_u24 v4, 11, v3")
    e("v_lshrrev_b32 v4, 5, v4")
    e("v_mul_u32_u24 v4, 768, v4")
    e("v_lshl_add_u32 v4, v3, 7, v4")
    e("v_mul_u32_u24 v2, 3456, v2")
    e("s_and_b32 s52, s4, 3")
    e("s_lshl_b32 s52, s52, 8")
    e("v_add3_u32 v2, v2, v4, s52")
    e(f"v_cmp_gt_u32 vcc, 18, {L}")
    e(f"v_mov_b32 v5, {OOB:#x}")
    e(f"v_and_b32 v3, {1 if e.opt.get('xpf') else 3}, {L}")
    if e.opt.get("xpf"):
        e("v_or_b32 v3, 2, v3")
    e("v_cndmask_b32 v2, v5, v2, vcc")
    e("v_cmp_eq_u32 vcc, s3, v3")
    e("s_nop 1")
    e(f"v_cndmask_b32 v{dst}, v5, v2, vcc")


def gen_loader(e):
    opt = e.opt
    L = f"v{LANE}"
    e("s_sub_u32 s50, s3, 4")
    if opt.get("lprio"):
        e(f"s_setprio {opt['lprio']}")
    e(f"v_lshrrev_b32 v1, 3, {L}")
    e(f"v_and_b32 v2, 7, {L}")
    e(f"v_lshrrev_b32 v3, 4, {L}")
    e("v_xor_b32 v4, v2, v3")
    e("v_xor_b32 v5, 4, v4")
    e("s_lshl_b32 s51, s48, 7")
    if opt.get("x_samex"):
        e("s_mov_b32 s51, 0")
    e("s_lshl_b32 s52, s50, 5")
    e("s_add_u32 s51, s51, s52")
    e("v_add_u32 v1, s51, v1")
    e("v_mul_u32_u24 v1, 1152, v1")
    for j in range(4):
        e(f"v_lshl_add_u32 v{10+j}, v{4 + j % 2}, 4, v1")
        if j:
            e(f"v_add_u32 v{10+j}, {j*8*1152}, v{10+j}")
    e("s_lshl_b32 s56, s50, 12")
    e(f"s_add_u32 s56, s56, {XB}")
    e("s_lshl_b32 s57, s50, 10")
    e("s_and_b32 s52, s4, 3")
    e("s_mul_i32 s52, s52, 288")
    e("s_and_b32 s53, s52, 0xffc0")
    e("s_add_u32 s54, s52, 144")
    e("s_and_b32 s54, s54, 0xffc0")
    e("s_add_u32 s54, s54, 1152")
    e(f"s_mov_b32 s55, {2304-192}")
    e("s_cmp_eq_u32 s49, 0")
    e("s_cselect_b32 s54, s53, s54")
    e(f"s_cselect_b32 s55, {1152-320}, s55")
    e("s_cselect_b32 s58, 20, 12")
    e("s_add_u32 s55, s55, s53")
    e(f"v_lshrrev_b32 v1, 5, {L}")
    e("v_lshlrev_b32 v2, 1, v1")
    e(f"v_xor_b32 v2, {L}, v2")
    e("s_and_b32 s59, s50, 1")
    e("s_lshl_b32 s59, s59, 2")
    e("v_subrev_u32 v2, s59, v2")
    e("s_lshl_b32 s59, s50, 1")
    e("v_add_u32 v1, s59, v1")
    e("v_mul_u32_u24 v1, 3456, v1")
    e("v_mov_b32 v5, s54")
    e("v_mov_b32 v6, s55")
    for h in range(2):
        if h:
            e("v_subrev_u32 v2, 8, v2")
        e("v_and_b32 v3, 31, v2")
        e("v_cmp_gt_u32 vcc, s58, v3")
        e("v_lshl_add_u32 v3, v3, 4, v1")
        e("s_nop 0")
        e("v_cndmask_b32 v4, v6, v5, vcc")
        e(f"v_add_u32 v{14+h}, v3, v4")

    def issue_x(stage):
        e(f"s_mov_b32 s60, {stage*128}")
        for j in range(4):
            e(f"s_add_u32 m0, s56, {(stage % 3) * XSLOT + j*1024}")
            e("s_nop 0")
            e(f"buffer_load_dwordx4 v{10+j}, s[12:15], s60 offen lds")

    def issue_w(stage, js):
        for j in js:
            e(f"s_add_u32 m0, s57, {(stage % 3) * WSLOT + j*4096}")
            e(f"s_mov_b32 s61, {(stage*64 + j*8)*3456}")
            e(f"buffer_load_dwordx4 v{14 + j % 2}, s[16:19], s61 offen lds")

    def touch():
        e("s_lshl_b32 s58, s4, 3")
        e("s_lshr_b32 s59, s5, 2")
        e("s_add_u32 s58, s58, s59")
        e(f"s_mul_i32 s58, s58, {HS}")
        e("s_and_b32 s59, s5, 3")
        e("s_lshl_b32 s59, s59, 2")
        e("s_add_u32 s59, s59, s50")
        e(f"s_mul_i32 s60, s59, {2*QCH}")
        e(f"s_add_u32 s60, s60, {QOFF}")
        e("s_mul_i32 s59, s59, 2560")
        e(f"s_sub_u32 s59, s59, {36*128}")
        e("v_mov_b32 v1, s59")
        e("v_mov_b32 v2, s60")
        e(f"v_cmp_gt_u32 vcc, 36, {L}")
        e(f"v_mov_b32 v3, {OOB:#x}")
        e("s_nop 0")
        e("v_cndmask_b32 v1, v1, v2, vcc")
        e(f"v_lshl_add_u32 v1, {L}, 7, v1")
        e(f"v_cmp_gt_u32 vcc, 56, {L}")
        e("s_nop 1")
        e("v_cndmask_b32 v1, v3, v1, vcc")
        e(f"buffer_load_dword v23, v1, {WS}, s58 offen sc1{' nt' if opt.get('tnt') else ''}")

    def counter_load():
        srd(e, 24, 44, 256)
        e(f"v_lshlrev_b32 v57, 6, {L}")
        e("buffer_load_dword v58, v57, s[24:27], 0 offen sc1")

    def gate_loads():
        srd(e, 20, 40, 1152)
        e("s_lshl_b32 s52, s4, 8")
        e("s_lshl_b32 s53, s5, 3")
        e("s_add_u32 s52, s52, s53")
        e("s_lshl_b32 s53, s50, 1")
        e("s_add_u32 s52, s52, s53")
        e(f"v_lshrrev_b32 v1, 5, {L}")
        e("v_add_u32 v1, s52, v1")
        e(f"v_and_b32 v4, 31, {L}")
        e("v_mul_u32_u24 v2, 36, v4")
        e("v_mov_b32 v3, 1152")
        e("v_mad_u32_u24 v3, v1, v3, v2")
        e(f"buffer_load_dwordx4 {vr(GX,4)}, v3, s[12:15], 0 offen")
        e(f"buffer_load_dwordx4 {vr(GX+4,4)}, v3, s[12:15], 0 offen offset:16")
        e(f"buffer_load_dword v{GX+8}, v3, s[12:15], 0 offen offset:32")
        e(f"buffer_load_dwordx4 {vr(GX+12,4)}, v2, s[20:23], 0 offen")
        e(f"buffer_load_dwordx4 {vr(GX+16,4)}, v2, s[20:23], 0 offen offset:16")
        e(f"buffer_load_dword v{GX+20}, v2, s[20:23], 0 offen offset:32")
        e("v_lshlrev_b32 v1, 2, v1")
        e("v_cmp_eq_u32 vcc, 0, v4")
        e(f"v_mov_b32 v5, {OOB:#x}")
        e(f"v_mov_b32 v{GX+9}, 0")
        e(f"v_cndmask_b32 v{GX+22}, v5, v1, vcc")

    def wo_gather():
        e(f"v_and_b32 v1, 15, {L}")
        e(f"v_lshrrev_b32 v2, 4, {L}")
        e("v_lshrrev_b32 v3, 2, v1")
        e("v_and_b32 v4, 3, v1")
        e("v_lshl_add_u32 v3, v3, 3, v4")
        e("v_lshrrev_b32 v6, 1, v2")
        e("v_mul_u32_u24 v6, 20, v6")
        e("v_and_b32 v4, 1, v2")
        e("v_lshl_add_u32 v6, v4, 3, v6")
        e("v_mul_u32_u24 v7, 144, v2")
        e("s_lshr_b32 s58, s2, 5")
        e("s_mul_i32 s58, s58, 72")
        e("s_bfe_u32 s59, s2, 0x20002")
        e("s_mul_i32 s59, s59, 36")
        e("s_and_b32 s62, s2, 3")
        e("s_mul_i32 s63, s62, 144")
        e("s_add_u32 s63, s63, s59")
        e("s_add_u32 s59, s59, 16")
        e("s_mov_b64 s[64:65], 0")
        e("s_mov_b32 s66, 16")
        wo_job_addr(e, 24, "s50", "s63", "s[64:65]", "s66")
        e("s_cmp_eq_u32 s50, 1")
        e("s_cselect_b32 s67, s62, 4")
        e("s_cmp_eq_u32 s62, 0")
        e("s_cselect_b32 s66, 3, 2")
        e("s_cmp_lt_u32 s50, s66")
        e("s_cselect_b32 s66, 16, 0")
        e("s_cmp_ge_u32 s50, 1")
        e("s_cselect_b64 s[64:65], -1, 0")
        e("s_cselect_b32 s71, s59, s63")
        wo_job_addr(e, 25, "s67", "s71", "s[64:65]", "s66")
        e("s_bitcmp1_b32 s2, 4")
        e("s_cselect_b32 s20, s38, s32")
        e("s_cselect_b32 s21, s39, s33")
        e(f"s_mov_b32 s22, {576*1152}")
        e("s_mov_b32 s23, 0x00020000")
        e(f"s_mov_b32 s60, {4*1152}")
        for job in range(2):
            for j in range(8):
                so = "0" if j < 4 else "s60"
                e(f"buffer_load_ushort v{WG+8*job+j}, v{24+job}, s[20:23], {so} offen offset:{(j%4)*1152}{' nt' if opt.get('wont') else ''}")

    lag = opt.get("lag", 0)
    order = []

    def do(item):
        k, st = item[:2]
        if k == "x":
            issue_x(st)
            order.append((k, st, 4))
        elif k == "w":
            for j in item[2]:
                issue_w(st, [j])
                order.append((k, st, 1, j))
        elif k == "t":
            touch()
            order.append((k, st, 1))
        elif k == "g":
            counter_load()
            order.append((k, st, 1))

    head, tail = range(0, 8 - lag), range(8 - lag, 8)
    e("s_waitcnt lgkmcnt(0)")
    common_srds(e)
    for it in [("x", 0), ("w", 0, range(8)), ("x", 1), ("w", 1, head)]:
        do(it)

    def after(pred):
        idx = max(k for k, o in enumerate(order) if pred(o))
        return sum(o[2] for o in order[idx+1:])

    for s in range(9):
        if s == 8:
            e(f"s_waitcnt vmcnt({after(lambda o: o[0] == 'w' and o[1] == 8 and o[3] == 3)})")
            e("s_barrier")
        e(f"s_waitcnt vmcnt({after(lambda o: o[0] in 'xw' and o[1] == s)})")
        if opt.get("lstamp") == 2:
            e.stamp(2 + s)
        e("s_barrier")
        if opt.get("lstamp") == 1:
            e.stamp(2 + s)
        if s == 0:
            e.stamp(1)
        if s + 1 <= 8:
            do(("w", s + 1, tail))
        if s + 2 <= 8:
            do(("x", s + 2))
            do(("w", s + 2, head))
        if s == opt.get("gpos", 7):
            do(("g", 0))
        if s == opt.get("touch", 7):
            do(("t", 0))
    e(f"s_waitcnt vmcnt({1 if order[-1][0] == 't' else 0})")
    gate_loads()
    if opt.get("lstamp"):
        e.final = opt["stamp"]
        e.opt = dict(opt, stamp=0)
    e.stamp(2)
    e("s_cmp_eq_u32 s3, 4")
    e("s_cbranch_scc1 .Lwave4")
    wo_gather()
    sm = opt.get("sidemode", 1)
    if sm == 1:
        e("s_waitcnt vmcnt(0)")
        side_calc(e)
    attn_setup(e)
    e("s_barrier")
    e.stamp(3)
    e("s_branch .Lp2_join")
    e.label(".Lwave4")
    e("v_cmp_le_u32 vcc, 64, v58")
    e("s_and_b32 s68, vcc_lo, 15")
    e("s_cmp_eq_u32 s68, 15")
    e("s_cbranch_scc1 .Lcleared")
    poll(e, 58, 57, "s[24:27]", "0", "v_cmp_le_u32 vcc, 64, v58", 0xf)
    e.label(".Lcleared")
    e("s_lshl_b32 s71, s4, 7")
    e(f"s_add_u32 s71, s71, {F1L}")
    e(f"v_and_b32 v13, 31, {L}")
    e("v_lshlrev_b32 v13, 2, v13")
    e(f"buffer_load_dword v14, v13, {WS}, s71 offen sc1")
    e("s_mov_b32 s7, s71")
    wo_gather()
    attn_setup(e)
    e("s_lshl_b32 s61, s5, 2")
    e("v_mov_b32 v11, s61")
    e("v_mov_b32 v12, s6")
    e(f"s_mov_b32 s70, {SPIN}")
    e("s_barrier")
    e.stamp(3)
    e("s_mov_b64 exec, 1")
    e(f"buffer_store_dword v12, v11, {WS}, s7 offen")
    e("s_mov_b64 exec, -1")
    e.label(".Lsync1")
    e(f"buffer_load_dword v14, v13, {WS}, s7 offen sc1")
    e("s_waitcnt vmcnt(0)")
    e("v_cmp_eq_u32 vcc, s6, v14")
    e("s_cmp_eq_u32 vcc_lo, -1")
    e("s_cbranch_scc1 .Lsync1_far" if opt.get("forceslow") else "s_cbranch_scc1 .Lp2_join")
    e("s_sub_u32 s70, s70, 1")
    e("s_and_b32 s68, s70, 31")
    e("s_cbranch_scc1 .Lsync1")
    e("s_mov_b64 exec, 1")
    e(f"buffer_store_dword v12, v11, {WS}, s7 offen offset:1024 sc1")
    e("s_mov_b64 exec, -1")
    e(f"buffer_load_dword v14, v13, {WS}, s7 offen offset:1024 sc1")
    e("s_waitcnt vmcnt(0)")
    e("v_cmp_eq_u32 vcc, s6, v14")
    e("v_cmp_eq_u32 s[68:69], 0, v14")
    e("s_cmp_eq_u32 vcc_lo, -1")
    e("s_cbranch_scc1 .Lp2_join")
    e("s_or_b32 s68, s68, vcc_lo")
    e("s_cmp_eq_u32 s68, -1")
    e("s_cbranch_scc0 .Lsync1_far")
    e("s_cmp_gt_u32 s70, 32")
    e("s_cbranch_scc1 .Lsync1")
    e.label(".Lsync1_far")
    e("buffer_wbl2 sc1")
    e("s_waitcnt vmcnt(0)")
    e("s_add_u32 s7, s7, 2048")
    e("s_mov_b64 exec, 1")
    e(f"buffer_store_dword v12, v11, {WS}, s7 offen sc1")
    e("s_mov_b64 exec, -1")
    poll(e, 14, 13, WS, "s7", "v_cmp_ne_u32 vcc, 0, v14", 0xffffffff)
    e("buffer_inv sc1")
    e("s_waitcnt vmcnt(0)")
    e("s_branch .Lp2_join")


def side_calc(e):
    z, t = GX + 9, GX + 10
    for j in range(9):
        e(f"v_dot2c_f32_bf16 v{z}, v{GX+j}, v{GX+12+j}")
    e("s_nop 2")
    for ctl in ("quad_perm:[1,0,3,2]", "quad_perm:[2,3,0,1]", "row_half_mirror", "row_mirror"):
        e(f"v_add_f32_dpp v{z}, v{z}, v{z} {ctl} row_mask:0xf bank_mask:0xf")
        e("s_nop 1")
    e(f"v_mov_b32 v{t}, v{z}")
    e("s_nop 1")
    e(f"v_permlane16_swap_b32 v{z}, v{t}")
    e("s_nop 1")
    e(f"v_add_f32 v{z}, v{z}, v{t}")
    e(f"v_mul_f32 v{z}, {f32(-math.log2(math.e))}, v{z}")
    e(f"v_exp_f32 v{z}, v{z}")
    e("s_nop 0")
    e(f"v_add_f32 v{z}, 1.0, v{z}")
    e(f"v_rcp_f32 v{z}, v{z}")
    e("s_nop 0")
    e(f"v_sub_f32 v{t}, 1.0, v{z}")
    for job in range(2):
        for j in range(4):
            e(f"v_lshl_or_b32 v{WG+8*job+j}, v{WG+8*job+2*j+1}, 16, v{WG+8*job+2*j}")


def wo_store(e):
    L = f"v{LANE}"
    e("s_cmp_ge_u32 s3, 4")
    e("s_cbranch_scc0 .Lwo_done")
    z, t = GX + 9, GX + 10
    if e.opt.get("sidemode", 1) == 1:
        e("s_cmp_eq_u32 s3, 4")
        e("s_cbranch_scc0 .Lside_ready")
    side_calc(e)
    e.label(".Lside_ready")
    e(f"s_mov_b32 s60, {GATE}")
    e(f"s_mov_b32 s61, {GATE + 8192}")
    e(f"buffer_store_dword v{z}, v{GX+22}, {WS}, s60 offen sc1")
    e(f"buffer_store_dword v{t}, v{GX+22}, {WS}, s61 offen sc1")
    e("s_lshr_b32 s60, s2, 2")
    e(f"s_mul_i32 s60, s60, {WSET}")
    e(f"s_add_u32 s60, s60, {WOP}")
    e("s_mul_i32 s61, s62, 5120")
    e("s_add_u32 s61, s61, s60")
    e("s_sub_u32 s63, s3, 4")
    e("s_lshl_b32 s63, s63, 10")
    e("s_add_u32 s63, s63, s61")
    e(f"buffer_store_dwordx4 {vr(WG,4)}, v{AK1}, {WS}, s63 offen sc1")
    e("s_cmp_eq_u32 s66, 0")
    e("s_cbranch_scc1 .Lwo_done")
    e("s_cmp_eq_u32 s3, 4")
    e("s_cbranch_scc0 .Lwo_extra")
    e("s_add_u32 s61, s61, 4096")
    e(f"buffer_store_dwordx4 {vr(WG+8,4)}, v{AK1}, {WS}, s61 offen sc1")
    e("s_branch .Lwo_done")
    e.label(".Lwo_extra")
    e("s_lshl_b32 s61, s67, 9")
    e("s_add_u32 s61, s61, s60")
    e("s_add_u32 s61, s61, 20480")
    e(f"v_lshlrev_b32 v{WG+4}, 3, {L}")
    e(f"buffer_store_dwordx2 {vr(WG+8,2)}, v{WG+4}, {WS}, s61 offen sc1")
    e.label(".Lwo_done")


def fo_word(e, d, t):
    e(f"s_and_b32 {d}, s4, 4")
    e(f"s_lshr_b32 {t}, s5, 3")
    e(f"s_add_u32 {d}, {d}, {t}")
    e(f"s_lshl_b32 {d}, {d}, 7")
    e(f"s_and_b32 {t}, s4, 3")
    e(f"s_lshl_b32 {t}, {t}, 3")
    e(f"s_add_u32 {d}, {d}, {t}")
    e(f"s_and_b32 {t}, s5, 4")
    e(f"s_add_u32 {d}, {d}, {t}")


def common_srds(e):
    if e.opt.get("wsoff"):
        e(f"s_add_u32 s8, s46, {e.opt['wsoff'] << 20}")
        e("s_addc_u32 s9, s47, 0")
        e(f"s_mov_b32 s10, {WS_BYTES - (e.opt['wsoff'] << 20)}")
        e("s_mov_b32 s11, 0x00020000")
    else:
        srd(e, 8, 46, WS_BYTES)
    srd(e, 12, 28, 0 if e.opt.get("g_nox") else 2048 * 1152)
    e("s_cmp_lt_u32 s4, 4")
    e("s_cselect_b32 s16, s30, s36")
    e("s_cselect_b32 s17, s31, s37")
    e(f"s_mov_b32 s18, {0 if e.opt.get('g_now') else 576*3456}")
    e("s_mov_b32 s19, 0x00020000")


def gen_consumer(e):
    opt = e.opt
    L = f"v{LANE}"
    e("s_and_b32 s50, s3, 1")
    e("s_lshr_b32 s51, s3, 1")
    w_prefetch_addr(e, 213)
    e(f"s_mov_b32 s71, {64*3456}")
    e("s_waitcnt lgkmcnt(0)")
    common_srds(e)

    xpf = opt.get("xpf", 0)
    if xpf:
        e("s_lshl_b32 s52, s5, 6")
        e("s_lshl_b32 s53, s3, 5")
        e("s_add_u32 s52, s52, s53")
        e(f"v_add_u32 v3, s52, {L}")
        e("v_mul_u32_u24 v3, 1152, v3")
        e(f"v_cmp_gt_u32 vcc, 32, {L}")
        e("s_cmp_lt_u32 s3, 2")
        e("s_cselect_b32 s20, s12, s16")
        e("v_cndmask_b32 v3, v5, v3, vcc")
        e("s_cselect_b32 s21, s13, s17")
        e("s_cselect_b32 s22, s14, s18")
        e("s_mov_b32 s23, 0x00020000")
        e(f"s_cselect_b32 s71, 128, s71")
        e("s_cselect_b64 vcc, -1, 0")
        e("v_cndmask_b32 v213, v213, v3, vcc")

    def prefetch(stage):
        if opt.get("nopf"):
            return
        if xpf:
            e(f"s_mul_i32 s53, s71, {stage}")
            e("buffer_load_dword v214, v213, s[20:23], s53 offen")
        else:
            e(f"s_mov_b32 s53, {stage*64*3456}")
            e("buffer_load_dword v214, v213, s[16:19], s53 offen")

    pfd = opt.get("pfd", 3)
    for st in range(opt.get("pf0", 0), pfd):
        prefetch(st)
    if opt.get("codepf", 0):
        e("s_cmp_eq_u32 s3, 2")
        e("s_cbranch_scc0 .Lnocode")
        e("s_getpc_b64 s[58:59]")
        e.label(".Lcode_here")
        e("s_mul_i32 s52, s5, 10")
        e(f"v_min_u32 v1, 9, {L}")
        e("v_add_u32 v1, s52, v1")
        e("v_lshlrev_b32 v1, 7, v1")
        e("v_min_u32 v1, .Lcode_end-.Lcode_here-4, v1")
        e("global_load_dword v214, v1, s[58:59]")
        e.label(".Lnocode")
    e("s_cmp_eq_u32 s3, 3")
    e("s_cbranch_scc0 .Lnoarrive")
    e("s_lshl_b32 s52, s4, 7")
    e("s_lshl_b32 s53, s5, 2")
    e("s_add_u32 s52, s52, s53")
    e(f"v_lshlrev_b32 v1, 10, {L}")
    e("v_add_u32 v1, s52, v1")
    e("s_lshl_b32 s52, s2, 2")
    e("s_add_u32 s52, s52, 3072")
    e("v_mov_b32 v3, s52")
    e("s_and_b32 s52, s5, 3")
    e("s_lshl_b32 s52, s52, 13")
    fo_word(e, "s53", "s54")
    e("s_add_u32 s52, s52, s53")
    e(f"v_lshlrev_b32 v2, 10, {L}")
    e("v_add_u32 v2, s52, v2")
    e(f"v_cmp_gt_u32 vcc, 3, {L}")
    e(f"v_mov_b32 v7, {OOB:#x}")
    e("v_mov_b32 v141, 0")
    e("v_cndmask_b32 v1, v2, v1, vcc")
    e(f"v_cmp_eq_u32 vcc, 3, {L}")
    e("s_nop 1")
    e("v_cndmask_b32 v1, v1, v3, vcc")
    e(f"v_cmp_gt_u32 vcc, 12, {L}")
    e("s_nop 1")
    e("v_cndmask_b32 v140, v7, v1, vcc")
    srd(e, 24, 44, 256)
    e(f"s_mov_b32 s52, {FLG}")
    e(f"buffer_store_dword v141, v140, {WS}, s52 offen sc1")
    e("s_and_b32 s52, s2, 3")
    e("s_lshl_b32 s52, s52, 6")
    e("v_mov_b32 v1, 1")
    e("s_waitcnt vmcnt(0)")
    e("s_mov_b64 exec, 1")
    e("buffer_atomic_add v1, v141, s[24:27], s52 offen")
    e("s_mov_b64 exec, -1")
    e.label(".Lnoarrive")
    e(f"v_and_b32 v1, 15, {L}")
    e(f"v_lshrrev_b32 v2, 4, {L}")
    e(f"v_bfe_u32 v3, {L}, 1, 3")
    e("v_xor_b32 v3, v2, v3")
    e("s_lshl_b32 s52, s51, 6")
    e("v_add_u32 v4, s52, v1")
    e("v_lshlrev_b32 v4, 7, v4")
    e("v_lshl_add_u32 v4, v3, 4, v4")
    e(f"v_add_u32 v207, {XB}, v4")
    e("v_xor_b32 v222, 64, v207")
    e("s_and_b32 s52, s4, 1")
    e("s_lshl_b32 s52, s52, 2")
    e("s_mul_i32 s53, s50, 27")
    e("s_add_u32 s52, s52, s53")
    e("s_mul_i32 s53, s50, 3")
    for p in range(3):
        e(f"s_add_u32 s59, s53, {p}")
        e("s_cmp_ge_u32 s59, 4")
        e("s_cselect_b32 s60, 4, 0")
        e("s_cmp_ge_u32 s59, 2")
        e("s_cselect_b32 s61, 6, 2")
        e("s_cmp_eq_u32 s49, 0")
        e("s_cselect_b32 s60, s60, s61")
        e(f"s_add_u32 s{62+p}, s52, {9*p}")
        e(f"s_add_u32 s{62+p}, s{62+p}, s60")
    e("v_lshrrev_b32 v3, 2, v1")
    e("v_lshl_add_u32 v4, v2, 3, v3")
    e("v_lshlrev_b32 v4, 9, v4")
    e(f"v_bfe_u32 v5, {L}, 3, 2")
    e("v_lshlrev_b32 v5, 3, v5")
    e("v_and_b32 v6, 4, v1")
    e("v_and_b32 v7, 3, v1")
    e("v_lshrrev_b32 v8, 1, v7")
    e("v_lshl_add_u32 v8, v7, 1, v8")
    e("v_add_u32 v8, v8, v5")
    for tile in range(7):
        if tile < 6:
            e(f"v_add_u32 v9, s{62 + tile//2}, v8")
            if tile % 2:
                e("v_add_u32 v9, 1, v9")
        else:
            e("v_mov_b32 v9, s64")
            e("v_mov_b32 v3, s63")
            e("v_cmp_eq_u32 vcc, 1, v7")
            e("s_nop 1")
            e("v_cndmask_b32 v9, v9, v3, vcc")
            e("v_mov_b32 v3, s62")
            e("v_cmp_eq_u32 vcc, 0, v7")
            e("s_nop 1")
            e("v_cndmask_b32 v9, v9, v3, vcc")
            e("v_add3_u32 v9, v9, v5, 4")
        e("v_and_b32 v9, 63, v9")
        e("v_xor_b32 v9, v9, v6")
        e(f"v_lshl_add_u32 v{200+tile}, v9, 3, v4")
        if tile == 6 and not opt.get("x_dup"):
            e("v_cmp_eq_u32 vcc, 3, v7")
            e("v_mov_b32 v3, 0x40000")
            e("s_nop 0")
            e(f"v_cndmask_b32 v{200+tile}, v{200+tile}, v3, vcc")
        e(f"v_add_u32 v{215+tile}, {2*WSLOT}, v{200+tile}")
    e("v_lshrrev_b32 v3, 1, v2")
    e(f"s_mov_b32 s52, {HS}")
    e("v_mul_lo_u32 v3, v3, s52")
    e("v_and_b32 v4, 1, v2")
    e("v_lshl_add_u32 v5, v4, 9, v3")
    e("v_lshl_add_u32 v208, v1, 4, v5")
    e("v_lshl_add_u32 v5, v4, 4, v3")
    e("v_lshl_add_u32 v209, v1, 5, v5")
    e("s_mul_i32 s52, s49, 12")
    e("s_mul_i32 s53, s50, 6")
    e("s_add_u32 s54, s52, s53")
    e("s_lshl_b32 s55, s48, 1")
    e("s_add_u32 s55, s55, s51")
    e("s_lshl_b32 s56, s4, 3")
    e("v_lshl_add_u32 v3, v2, 1, s54")
    e("v_lshrrev_b32 v4, 3, v3")
    e("v_and_b32 v3, 7, v3")
    e("v_add_u32 v3, s56, v3")
    e(f"s_mov_b32 s52, {HS}")
    e("v_mul_lo_u32 v3, v3, s52")
    e(f"s_mul_i32 s57, s55, {QCH}")
    e(f"s_add_u32 s57, s57, {QOFF}")
    e(f"s_mul_i32 s58, s55, {CH}")
    e("v_lshrrev_b32 v5, 3, v1")
    e("v_mul_u32_u24 v5, 512, v5")
    e("v_add_u32 v5, s58, v5")
    e("v_mov_b32 v6, s57")
    e("v_cmp_eq_u32 vcc, 0, v4")
    e(f"v_mov_b32 v7, {f32(QSCALE)}")
    e("s_nop 0")
    e("v_cndmask_b32 v5, v5, v6, vcc")
    e("v_cndmask_b32 v212, 1.0, v7, vcc")
    e("v_add_u32 v5, v5, v3")
    e("v_lshl_add_u32 v5, v1, 4, v5")
    e("v_add_u32 v210, 2048, v5")
    e("v_lshlrev_b32 v6, 5, v1")
    e("v_add3_u32 v6, v6, v3, s58")
    e(f"v_add_u32 v211, {VX}, v6")
    e(f"v_mov_b32 v7, {OOB:#x}")
    e("v_cmp_eq_u32 vcc, 2, v4")
    e("s_nop 1")
    e("v_cndmask_b32 v210, v210, v7, vcc")
    e("v_cndmask_b32 v211, v7, v211, vcc")
    e("v_cmp_eq_u32 vcc, 3, v2")
    e("s_nop 1")
    e("v_cndmask_b32 v210, v210, v7, vcc")
    e("v_cndmask_b32 v211, v211, v7, vcc")

    F = [112, 156]

    def reads(stage, ks, fb):
        slot = stage % 3
        xr = [f"ds_read_b128 {vr(fb+4*tt,4)}, v{222 if ks else 207} offset:{slot*XSLOT + tt*2048}" for tt in range(4)]
        wr_ = []
        for tile in range(7):
            for r in range(2):
                a = (215 if slot == 2 else 200) + tile
                off = (WSLOT if slot == 1 else 0) + ks * 16384 + r * 2048
                wr_.append(f"ds_read_b64_tr_b16 {vr(fb+16+4*tile+2*r,2)}, v{a} offset:{off}")
        return xr[0:2] + wr_[0:2] + xr[2:4] + wr_[2:]

    def mfmas(fb, first):
        out = []
        for tile in range(7):
            for tt in range(4):
                acc = vr((tt * 7 + tile) * 4, 4)
                c = "0" if first else acc
                out.append(f"v_mfma_f32_16x16x32_bf16 {acc}, {vr(fb+16+4*tile,4)}, {vr(fb+4*tt,4)}, {c}")
        return out

    e("s_barrier")
    e.stamp(1)
    for r in reads(0, 0, F[0]):
        e(r)
    e("s_waitcnt lgkmcnt(0)")
    def mix(m, rd):
        for i, x in enumerate(m):
            e(x)
            if i < len(rd):
                e(rd[i])

    if pfd <= 8:
        prefetch(pfd)
    for ph in range(15):
        s, ks = divmod(ph, 2)
        mix(mfmas(F[ks], ph == 0), reads(s, 1, F[1]) if ks == 0 else reads(s + 1, 0, F[0]))
        e("s_waitcnt lgkmcnt(0)")
        if ks == 0 and s < 7:
            e("s_barrier")
            if s + 1 + pfd <= 8:
                prefetch(s + 1 + pfd)
    m = mfmas(F[1], False)
    mix(m[:14], [])
    e("s_barrier")
    mix(m[14:], reads(8, 0, F[0])[:14])
    for r in reads(8, 0, F[0])[14:]:
        e(r)
    e("s_waitcnt lgkmcnt(0)")
    m = mfmas(F[0], False)
    mix(m[:10], [])
    e("s_barrier")
    mix(m[10:], reads(8, 1, F[1]))
    e("s_waitcnt lgkmcnt(0)")
    last = mfmas(F[1], False)
    mix(last[:8], [])
    e.stamp(2)
    for p in range(3):
        e(f"s_add_u32 s52, s54, {2*p}")
        e("s_lshr_b32 s53, s52, 3")
        e("s_and_b32 s52, s52, 7")
        e("s_add_u32 s52, s52, s56")
        e(f"s_mul_i32 s52, s52, {HS}")
        e("s_cmp_eq_u32 s53, 0")
        e("s_cselect_b32 s59, s57, s58")
        e("s_add_u32 s60, s52, s59")
        e("s_cmp_eq_u32 s53, 2")
        e(f"s_cbranch_scc1 .Lqkv_ep_v{p}")
        e("s_cmp_eq_u32 s53, 0")
        e(f"s_cbranch_scc0 .Lqkv_ep_k{p}")
        e(f"s_mov_b32 s59, {f32(QSCALE)}")
        for kind in "qkv":
            if kind != "q":
                e.label(f".Lqkv_ep_{kind}{p}")
            if kind == "v":
                e(f"s_add_u32 s60, s60, {VM}")
            todo = list(last[8 + 8*p: 16 + 8*p])
            for tt in range(4):
                r = (tt * 7 + 2 * p) * 4
                d = 112 + (p % 2) * 16 + tt * 4 if p < 2 else 144 + (tt % 2) * 4 + (tt // 2) * 80
                ops = []
                if kind == "q":
                    ops += [f"v_mul_f32 v{r+j}, s59, v{r+j}" for j in range(8)]
                ops += [f"v_cvt_pk_bf16_f32 v{d+j}, v{r+2*j}, v{r+2*j+1}" for j in range(4)]
                for k, x in enumerate(ops):
                    if k % 2 == 0 and todo:
                        e(todo.pop(0))
                    e(x)
                if kind == "v":
                    e(f"buffer_store_dwordx4 {vr(d,4)}, v209, {WS}, s60 offen offset:{tt*512}")
                else:
                    e(f"buffer_store_dwordx4 {vr(d,4)}, v208, {WS}, s60 offen offset:{(tt//2)*1024 + (tt%2)*256}")
            assert not todo
            if kind != "v":
                e(f"s_branch .Lqkv_ep_n{p}")
        e.label(f".Lqkv_ep_n{p}")
    X = 160
    for tt in range(4):
        r = (tt * 7 + 6) * 4
        for j in range(4):
            e(f"v_mul_f32 v{r+j}, v212, v{r+j}")
        e(f"v_cvt_pk_bf16_f32 v{X+tt}, v{r}, v{r+1}")
        e(f"v_cvt_pk_bf16_f32 v{X+4+tt}, v{r+2}, v{r+3}")
    e(f"s_mov_b32 s59, {HS}")
    e("s_cmp_ge_u32 s54, 16")
    e("s_cbranch_scc1 .Lqkv_ex_v")
    e(f"buffer_store_dwordx4 {vr(X,4)}, v210, {WS}, 0 offen")
    e(f"buffer_store_dwordx4 {vr(X+4,4)}, v210, {WS}, s59 offen")
    e("s_cmp_ge_u32 s54, 12")
    e("s_cbranch_scc0 .Lp1_join")
    e.label(".Lqkv_ex_v")
    for k in range(8):
        e(f"v_mov_b32 v{X+8+2*k}, v{X+k}")
        e(f"v_mov_b32 v{X+9+2*k}, 0x3f80")
    for k in range(4):
        e(f"buffer_store_dwordx4 {vr(X+8+4*k,4)}, v211, {WS}, {'0' if k < 2 else 's59'} offen offset:{(k%2)*16}")
    e.label(".Lp1_join")
    e("s_waitcnt vmcnt(0)")
    e("s_barrier")
    e.stamp(3)
    e.label(".Lp1_done")


X_, Y_ = 0, 32
OA, OB = 64, 80
Q1A, Q1B, Q2A, Q2B = 96, 100, 104, 106
K1LO, K1HI, K2R = 108, 112, 116
IDX, AK1, AK2, AK20 = 118, 119, 120, 121
AV, AVI = 140, 144
VF = 124
WOM, WOE, GT = 152, 232, 242


def rdV(j, off):
    return [f"ds_read_b64_tr_b16 {vr(VF+4*j+2*r,2)}, v{AV+j} offset:{off + r*128}" for r in range(2)]


def pv(o, j, src):
    return f"v_smfmac_f32_32x32x32_bf16 {vr(o,16)}, {vr(VF+4*j,4)}, {vr(src+8*j,8)}, v{IDX}"


def dma_round(e, step=8192, off=0):
    if step:
        e(f"s_add_u32 m0, m0, {step}")
        e(f"s_add_u32 s53, s53, {step}")
    e(f"buffer_load_dwordx4 v{AK1}, {WS}, s53 offen offset:{off} sc1 lds")


def attn_unit(e, which, ci, first=False, side=()):
    if which == "A":
        cur, oth, o, op, q1, q2 = X_, Y_, OA, OB, Q1B, Q2B
    else:
        cur, oth, o, op, q1, q2 = Y_, X_, OB, OA, Q1A, Q2A
    c0, c1 = ci * CH, (ci + 1) * CH
    A = which == "A"
    wfirst = e.opt.get("wfirst", 1)

    def ex(a, b):
        for i in range(a, b + 1):
            e(f"v_exp_f32 v{cur+i}, v{cur+i}")

    def slot(rd, wait=None):
        if e.opt.get("x_halfv") and rd and "tr_b16" in rd and "offset:%d" % (c0 + 128) + "$" in rd + "$":
            rd = None
        if e.opt.get("x_halfv") and rd and "tr_b16" in rd and "offset:%d" % (c1 + 128) + "$" in rd + "$":
            rd = None
        if e.opt.get("x_nolds"):
            rd = None
        if wait is not None and wfirst:
            e(f"s_waitcnt lgkmcnt({wait})")
        if rd:
            e(rd)
        if wait is not None and not wfirst:
            e(f"s_waitcnt lgkmcnt({wait + 1})")

    side = list(side)

    def job():
        if side:
            side.pop(0)()

    ex(0, 1)
    if not first:
        e(pv(op, 3, oth))
    if A:
        slot(rdV(2, c0)[1], 1)
    else:
        job()
        job()
    ex(2, 4)
    xv = e.opt.get("xv", 0)
    if xv == 1:
        e(f"v_mfma_f32_32x32x8_bf16 {vr(oth,16)}, {vr(K2R,2)}, {vr(q2,2)}, 0")
        ex(5, 7)
        e(f"v_mfma_f32_32x32x8_bf16 {vr(oth+16,16)}, {vr(K2R,2)}, {vr(q2,2)}, 0")
    elif xv == 2:
        e(f"v_mfma_f32_16x16x4_4b_bf16 {vr(oth,16)}, {vr(K2R,2)}, {vr(q2,2)}, 0")
        ex(5, 7)
        e(f"v_mfma_f32_16x16x4_4b_bf16 {vr(oth+16,16)}, {vr(K2R,2)}, {vr(q2,2)}, 0")
    else:
        e(f"v_mfma_f32_32x32x4_2b_bf16 {vr(oth,32)}, {vr(K2R,2)}, {vr(q2,2)}, 0")
    pr = e.opt.get("prio", 8)
    if pr:
        u = (2 * ci + (0 if A else 1)) % (2 * pr)
        for at, lvl in ((0, 2), (2 * pr - e.opt.get("priol", 2), 0)):
            if u == at:
                lab = e.uid("pr")
                e("s_cmp_lt_u32 s3, 4")
                e(f"s_cbranch_scc0 {lab}")
                e(f"s_setprio {lvl}")
                e.label(lab)
    jp = e.opt.get("jobpos", 0)
    if jp == 0:
        job()
    ex(8 if xv in (1, 2) else 5, 12)
    e(pv(o, 0, cur))
    if jp == 2:
        job()
    slot(f"ds_read_b32 v{K2R}, v{AK2} offset:{c1}" if A else rdV(0, c1)[0])
    if jp == 1:
        job()
    ex(13, 17)
    e(pv(o, 1, cur))
    slot(rdV(3, c0)[0] if A else rdV(0, c1)[1], 1)
    ex(18, 20)
    e(f"v_mfma_f32_32x32x16_bf16 {vr(oth,16)}, {vr(K1LO,4)}, {vr(q1,4)}, {vr(oth,16)}")
    slot(rdV(3, c0)[1] if A else rdV(1, c1)[0])
    ex(21, 23)
    e(f"v_mfma_f32_32x32x16_bf16 {vr(oth+16,16)}, {vr(K1HI,4)}, {vr(q1,4)}, {vr(oth+16,16)}")
    slot(f"ds_read_b128 {vr(K1LO,4)}, v{AK1} offset:{c1}" if A else rdV(1, c1)[1])
    ex(24, 26)
    e(pv(o, 2, cur))
    if A:
        slot(f"ds_read_b128 {vr(K1HI,4)}, v{AK1} offset:{c1 + 1024}", 1)
    else:
        slot(rdV(2, c1)[0])
    ex(27, 29)
    xm = e.opt.get("x_mf", 0)
    if xm == 1:
        e(f"v_smfmac_f32_32x32x32_bf16 {vr(152,16)}, {vr(VF+4,4)}, {vr(cur+8,8)}, v{IDX}")
    if xm == 2:
        e(f"v_mfma_f32_32x32x16_bf16 {vr(152,16)}, {vr(K1HI,4)}, {vr(q1,4)}, {vr(168,16)}")
    if xm == 3:
        e(f"v_mfma_f32_32x32x16_bf16 {vr(152,16)}, {vr(K1HI,4)}, {vr(q1,4)}, 0")
    if xm == 4:
        e(f"v_mfma_f32_32x32x8_bf16 {vr(152,16)}, {vr(K2R,2)}, {vr(q2,2)}, 0")
    if xm == 5:
        e(f"v_mfma_f32_16x16x32_bf16 {vr(152,4)}, {vr(K1HI,4)}, {vr(q1,4)}, 0")
        e(f"v_mfma_f32_16x16x32_bf16 {vr(156,4)}, {vr(K1LO,4)}, {vr(q1,4)}, 0")
    if xm == 6:
        e(f"v_mfma_f32_16x16x4_4b_bf16 {vr(152,16)}, {vr(K2R,2)}, {vr(q2,2)}, 0")
    if xm == 7:
        e(f"v_mfma_f32_32x32x16_bf16 {vr(152,16)}, {vr(184,4)}, {vr(184,4)}, 0")
    for _ in range(e.opt.get("x_vnop", 0)):
        e("v_nop")
    for k in range(e.opt.get("x_vexp", 0)):
        e(f"v_exp_f32 v{T1}, v{cur+k}")
    ex(30, 31)
    assert not side


def max_tree(e, dst, src, n, init):
    i = 0
    if not init:
        e(f"v_max3_f32 v{dst}, v{src}, v{src+1}, v{src+2}")
        i = 3
    while i + 1 < n:
        e(f"v_max3_f32 v{dst}, v{src+i}, v{src+i+1}, v{dst}")
        i += 2
    if i < n:
        e(f"v_max_f32 v{dst}, v{src+i}, v{dst}")


def set_m(e, pairs, exact=True):
    for m, t, q in pairs:
        e(f"v_mov_b32 v{t}, v{m}")
    e("s_nop 1")
    for m, t, q in pairs:
        e(f"v_permlane32_swap_b32 v{m}, v{t}")
    e("s_nop 1")
    for m, t, q in pairs:
        e(f"v_max_f32 v{m}, v{m}, v{t}")
    if not exact:
        for m, t, q in pairs:
            e(f"v_cvt_pk_bf16_f32 v{q}, -v{m}, 0")
        return
    for m, t, q in pairs:
        e(f"v_cvt_pk_bf16_f32 v{t}, v{m}, v{m}")
    for m, t, q in pairs:
        e(f"v_lshlrev_b32 v{t}, 16, v{t}")
    for m, t, q in pairs:
        e(f"v_sub_f32 v{m}, v{m}, v{t}")
    for m, t, q in pairs:
        e(f"v_cvt_pk_bf16_f32 v{q}, -v{t}, -v{m}")


def attn_addr_init(e):
    e(f"v_lshlrev_b32 v{AK1}, 4, v{LANE}")
    e(f"v_mov_b32 v{AK2}, v{AK20}")
    for j in range(4):
        e(f"v_mov_b32 v{AV+j}, v{AVI+j}")


def attn_setup(e):
    L = f"v{LANE}"
    e("s_lshl_b32 s48, s4, 3")
    e("s_lshr_b32 s49, s5, 2")
    e("s_add_u32 s48, s48, s49")
    e("s_and_b32 s49, s5, 3")
    e("s_lshl_b32 s49, s49, 3")
    e("s_add_u32 s49, s49, s3")
    e(f"s_mul_i32 s50, s48, {HS}")
    e(f"s_mul_i32 s51, s49, {QCH}")
    e("s_add_u32 s51, s51, s50")
    e(f"s_add_u32 s51, s51, {QOFF}")
    e("s_lshl_b32 s52, s3, 10")
    e("s_add_u32 s53, s50, s52")
    e("s_mov_b32 m0, s52")
    e(f"v_and_b32 v2, 15, {L}")
    e(f"v_lshrrev_b32 v3, 4, {L}")
    e("v_lshrrev_b32 v4, 1, v3")
    e("v_lshlrev_b32 v4, 8, v4")
    e("v_lshrrev_b32 v5, 2, v2")
    e("v_lshl_add_u32 v4, v5, 5, v4")
    e("v_and_b32 v6, 1, v2")
    e("v_bfe_u32 v7, v2, 1, 1")
    e("v_lshl_add_u32 v6, v6, 1, v7")
    e("v_lshlrev_b32 v6, 3, v6")
    e(f"v_add_u32 v6, {VM}, v6")
    e("v_and_b32 v9, 3, v2")
    e("v_cmp_eq_u32 vcc, 0, v9")
    e("v_mov_b32 v9, 0x40000")
    e(f"v_mov_b32 v7, {VX}")
    e("v_and_b32 v8, 1, v3")
    e("v_cndmask_b32 v7, v9, v7, vcc")
    e("v_cmp_eq_u32 vcc, 0, v8")
    e("v_mov_b32 v9, 512")
    e("v_and_b32 v1, 7, v2")
    e("v_cndmask_b32 v6, v7, v6, vcc")
    e("v_cndmask_b32 v9, 8, v9, vcc")
    e(f"v_add_u32 v{AVI}, v4, v6")
    for j in range(1, 4):
        e(f"v_add_u32 v{AVI+j}, v{AVI+j-1}, v9")
    e("v_lshlrev_b32 v1, 4, v1")
    e("v_lshl_add_u32 v1, v3, 2, v1")
    e("v_lshrrev_b32 v5, 3, v2")
    e("v_mul_u32_u24 v5, 640, v5")
    e("v_add_u32 v1, 2048, v1")
    e(f"v_add_u32 v{AK20}, v1, v5")
    e("v_lshlrev_b32 v1, 2, v8")
    e(f"v_lshl_add_u32 v{T0}, v2, 4, v1")
    attn_addr_init(e)
    e(f"v_mov_b32 v{IDX}, 0xdddddddd")
    e(f"v_mov_b32 v{K2R+1}, 0x3f803f80")
    for i in range(32):
        e(f"v_mov_b32 v{OA+i}, 0")
    e("s_mov_b32 s55, 0")
    if e.opt.get("x_mf") == 7:
        for i in range(4):
            e(f"v_mov_b32 v{184+i}, 0")
    e("s_setprio 1")


def gen_attn(e):
    opt = e.opt
    L = f"v{LANE}"
    e("s_barrier")
    e.stamp(4)
    if opt.get("probe"):
        e(f"buffer_load_dwordx4 {vr(Q1A,4)}, v{AK1}, {WS}, s51 offen sc1")
        e("s_waitcnt vmcnt(0)")
        e.stamp(6)
        e(f"buffer_load_dword v{Q2A}, v{T0}, {WS}, s51 offen offset:2048 sc1")
        e("s_waitcnt vmcnt(0)")
        e.stamp(7)
        e(f"buffer_load_dwordx4 v{AK1}, {WS}, s53 offen sc1 lds")
        e("s_waitcnt vmcnt(0)")
        e.stamp(8)
        e(f"buffer_load_dwordx4 {vr(Q1B,4)}, v{AK1}, {WS}, s51 offen offset:1024 sc1")
        e("s_waitcnt vmcnt(0)")
        e.stamp(9)
        e.opt = dict(opt, stamp=0)
        e.final = opt["stamp"]
    e(f"buffer_load_dwordx4 {vr(Q1A,4)}, v{AK1}, {WS}, s51 offen sc1")
    e(f"buffer_load_dwordx4 v{AK1}, {WS}, s53 offen sc1 lds")
    e(f"buffer_load_dwordx4 {vr(Q1B,4)}, v{AK1}, {WS}, s51 offen offset:1024 sc1")
    dma_round(e)
    e(f"buffer_load_dword v{Q2A}, v{T0}, {WS}, s51 offen offset:2048 sc1")
    e(f"buffer_load_dword v{Q2B}, v{T0}, {WS}, s51 offen offset:2056 sc1")
    e("s_waitcnt vmcnt(0)")
    e("s_barrier")
    e.stamp(5)
    e(f"ds_read_b128 {vr(K1LO,4)}, v{AK1}")
    e(f"ds_read_b128 {vr(K1HI,4)}, v{AK1} offset:1024")
    e(f"ds_read_b32 v{K2R}, v{AK2}")
    for j in range(3):
        for r in rdV(j, 0):
            e(r)
    e("s_waitcnt lgkmcnt(8)")
    e(f"v_mfma_f32_32x32x16_bf16 {vr(X_,16)}, {vr(K1LO,4)}, {vr(Q1A,4)}, 0")
    e(f"v_mfma_f32_32x32x16_bf16 {vr(Y_,16)}, {vr(K1LO,4)}, {vr(Q1B,4)}, 0")
    e("s_waitcnt lgkmcnt(7)")
    e(f"v_mfma_f32_32x32x16_bf16 {vr(X_+16,16)}, {vr(K1HI,4)}, {vr(Q1A,4)}, 0")
    dma_round(e)
    e("s_mul_i32 s59, s3, 3072")
    e("s_add_u32 s59, s59, 8192")
    e("s_add_u32 m0, m0, s59")
    e("s_add_u32 s53, s53, s59")
    for k in range(2):
        dma_round(e, 0, 1024 * k)
    e("s_nop 0")
    if opt.get("x_nom"):
        e(f"v_mov_b32 v{Q2A+1}, 0")
        e(f"v_mov_b32 v{Q2B+1}, 0")
    else:
        nm = opt.get("mregs", 16)
        max_tree(e, Y_ + 16, X_, nm, False)
        max_tree(e, Y_ + 17, Y_, nm, False)
        set_m(e, [(Y_ + 16, Y_ + 18, Q2A + 1), (Y_ + 17, Y_ + 19, Q2B + 1)], exact=False)
    e("s_waitcnt lgkmcnt(0)")
    e("s_nop 0")
    e(f"v_mfma_f32_32x32x4_2b_bf16 {vr(X_,32)}, {vr(K2R,2)}, {vr(Q2A,2)}, {vr(X_,32)}")
    e("s_lshr_b32 s56, s5, 2")
    e("s_lshl_b32 s56, s56, 3")
    e("s_add_u32 s56, s56, s3")
    e("s_lshl_b32 s57, s56, 4")
    e("s_and_b32 s59, s5, 3")
    e("s_lshl_b32 s59, s59, 8")
    e("s_lshl_b32 s60, s4, 2")
    e("s_add_u32 s59, s59, s60")
    e("s_sub_u32 s59, s59, 128")
    e(f"v_lshl_add_u32 v246, {L}, 2, s57")
    e(f"v_lshl_add_u32 v247, {L}, 5, s59")
    e(f"v_cmp_gt_u32 vcc, 4, {L}")
    e(f"s_mov_b32 s57, {FW}")
    e(f"v_and_b32 v247, 0x3ff, v247")
    e("v_cndmask_b32 v246, v247, v246, vcc")
    e(f"s_mul_i32 s56, s56, {WSET}")
    e(f"s_add_u32 s24, s56, {WOP}")
    e("s_and_b32 s58, s3, 3" if opt.get("rrole", 2) else "s_lshr_b32 s58, s3, 1")
    e("s_lshl_b32 s58, s58, 6")
    e("s_lshl_b32 s59, s4, 10")
    e("s_add_u32 s58, s58, s59")
    e("s_and_b32 s59, s5, 3")
    e("s_lshl_b32 s59, s59, 8")
    e("s_add_u32 s58, s58, s59")
    e(f"s_add_u32 s25, s58, {GATE}")
    e(f"v_lshlrev_b32 v{T0}, 2, {L}")
    e(f"v_lshlrev_b32 v148, 4, {L}")
    e(f"v_lshlrev_b32 v149, 3, {L}")
    e(f"v_and_b32 v150, 60, v{T0}")
    e("v_add_u32 v151, 4096, v148")
    e(f"v_and_b32 v{T1}, 8, {L}")
    e(f"v_lshlrev_b32 v{T1}, 28, v{T1}")
    e(f"v_or_b32 v151, v151, v{T1}")
    wo_store(e)
    jobs = [(lambda k=k: dma_round(e, 32768 if k % 4 == 0 else 0, 1024 * (k % 4))) for k in range(2, 16)]
    if opt.get("x_nodma"):
        jobs = []
    for ci in range(8):
        if ci == 2:
            if not opt.get("x_nob1"):
                e("s_waitcnt vmcnt(6)")
                e("s_barrier")
            e("s_cmp_eq_u32 s3, 4")
            e("s_cbranch_scc0 .Lnofw")
            e("s_lshl_b32 s59, s2, 2")
            e(f"s_add_u32 s59, s59, {FW}")
            e("s_mov_b64 exec, 1")
            e(f"buffer_store_dword v{IDX}, v{T0}, {WS}, s59 offen sc1")
            e("s_mov_b64 exec, -1")
            e.label(".Lnofw")
        if ci == 7:
            if not opt.get("x_nob2"):
                e("s_waitcnt vmcnt(0)")
                e("s_barrier")
            e(f"buffer_load_dword v{T1}, v246, {WS}, s57 offen sc1")
        for w in "AB":
            n = 1 if w == "A" else 3
            side, jobs = jobs[:n], jobs[n:]
            attn_unit(e, w, ci, first=(ci == 0 and w == "A"), side=side)
    for a in (AK1, AK2, AV, AV + 1, AV + 2, AV + 3):
        e(f"v_add_u32 v{a}, {8*CH}, v{a}")
    e.stamp(6)
    e("s_lshl_b32 s21, s49, 10")
    fo_word(e, "s22", "s23")
    e("s_add_u32 s21, s21, s22")
    e(f"s_add_u32 s21, s21, {FO}")
    e("s_lshl_b32 s50, s4, 2")
    e("s_and_b32 s51, s5, 3")
    e("s_add_u32 s50, s50, s51")
    e("s_lshr_b32 s51, s5, 2")
    e("s_lshl_b32 s20, s50, 10")
    e("s_lshl_b32 s22, s3, 7")
    e("s_add_u32 s20, s20, s22")
    e(f"s_add_u32 s20, s20, {FO}")
    e(f"v_and_b32 v250, 7, {L}")
    e("v_lshlrev_b32 v250, 2, v250")
    if opt.get("wb"):
        e("s_cmp_eq_u32 s3, 7")
        e("s_cbranch_scc0 .Lnowb")
        if opt["wb"] == 2:
            e("s_cmp_eq_u32 s5, 0")
            e("s_cbranch_scc0 .Lnowb")
        e("buffer_wbl2 sc1")
        e.label(".Lnowb")
    jobs = []

    def wo_load(k):
        if k < 20:
            r, tile = divmod(k, 5)
            if tile == 0:
                e(f"s_add_u32 s59, s4, {r + 1}")
                e("s_and_b32 s59, s59, 3")
                e("s_mul_i32 s59, s59, 5120")
                e("s_add_u32 s26, s59, s24")
            a_, off = (148, tile * 1024) if tile < 4 else (151, 0)
            e(f"buffer_load_dwordx4 {vr(WOM+4*k,4)}, v{a_}, {WS}, s26 offen offset:{off} sc1")
        elif k < 25:
            if k == 20:
                e("s_add_u32 s26, s24, 20480")
            e(f"buffer_load_dwordx2 {vr(WOE+2*(k-20),2)}, v149, {WS}, s26 offen offset:{(k-20)*512} sc1")
        else:
            if k == 26:
                e("s_add_u32 s26, s25, 8192")
            e(f"buffer_load_dword v{GT+k-25}, v150, {WS}, {'s25' if k == 25 else 's26'} offen sc1")

    jobs = [(lambda k=k: wo_load(k)) for k in range(27)]
    na, nb = opt.get("wo_a", 27), opt.get("wo_b", 27)
    e.late = (jobs[na:nb], jobs[nb:])
    jobs = jobs[:na]
    poll(e, T1, 246, WS, "s57", f"v_cmp_ne_u32 vcc, 0, v{T1}", 0xfff, first_loaded=True)
    for ci in range(8):
        for w in "AB":
            n = 1 if w == "A" else 3
            side, jobs = jobs[:n], jobs[n:]
            attn_unit(e, w, ci, side=side)
    for a in (AK1, AK2, AV, AV + 1, AV + 2, AV + 3):
        e(f"v_add_u32 v{a}, {8*CH}, v{a}")
    e("s_mov_b32 s54, 2")
    if opt.get("x_skip"):
        e.stamp(6)
        e("s_mov_b32 s55, 1")
        e({1: "s_bitcmp1_b32 s4, 0", 2: "s_bitcmp1_b32 s5, 0", 3: "s_bitcmp1_b32 s4, 2"}[opt["x_skip"]])
        e("s_cbranch_scc1 .Lattn_done")
    if opt.get("solo"):
        e.stamp(12)
        e("s_barrier")
        e.stamp(6)
        e("s_mov_b32 s55, 1")
        if opt["solo"] == 1:
            e("s_cmp_ge_u32 s3, 4")
            e("s_cbranch_scc1 .Lattn_done")
    e.raw(".p2align 6")
    e.label(".Lattn_loop")
    for ci in range(8):
        attn_unit(e, "A", ci)
        attn_unit(e, "B", ci)
    for a in (AK1, AK2, AV, AV + 1, AV + 2, AV + 3):
        e(f"v_add_u32 v{a}, {8*CH}, v{a}")
    e("s_sub_u32 s54, s54, 1")
    e("s_cmp_lg_u32 s54, 0")
    e("s_cbranch_scc1 .Lattn_loop")
    e.label(".Lattn_done")
    e(pv(OB, 3, Y_))
    e(f"buffer_load_dword v254, v250, {WS}, s20 offen sc1")
    e("s_waitcnt lgkmcnt(0)")
    e.stamp(7)
    e(f"v_mov_b32 v4, v{OA+10}")
    e(f"v_lshlrev_b32 v2, 4, {L}")
    e(f"v_lshlrev_b32 v3, 2, {L}")
    e(f"v_permlane32_swap_b32 v{OA+10}, v4")
    e("s_lshl_b32 s56, s48, 16")
    e("s_lshl_b32 s57, s49, 11")
    e("s_add_u32 s56, s56, s57")
    e(f"s_add_u32 s56, s56, {O1}")
    e(f"v_rcp_f32 v0, v{OA+10}")
    e("s_lshl_b32 s57, s48, 13")
    e("s_lshl_b32 s58, s49, 8")
    e("s_add_u32 s57, s57, s58")
    e(f"s_add_u32 s57, s57, {O2}")
    e(f"v_mov_b32 v4, v{OB+10}")
    for i in range(10):
        e(f"v_mul_f32 v{OA+i}, v0, v{OA+i}")
    e(f"v_permlane32_swap_b32 v{OB+10}, v4")
    for j in range(5):
        e(f"v_cvt_pk_bf16_f32 v{8+j}, v{OA+2*j}, v{OA+2*j+1}")
    e(f"v_rcp_f32 v1, v{OB+10}")
    e(f"buffer_store_dwordx4 v[8:11], v2, {WS}, s56 offen sc1")
    for i in range(10):
        e(f"v_mul_f32 v{OB+i}, v1, v{OB+i}")
    for j in range(5):
        e(f"v_cvt_pk_bf16_f32 v{16+j}, v{OB+2*j}, v{OB+2*j+1}")
    e(f"buffer_store_dwordx4 v[16:19], v2, {WS}, s56 offen offset:1024 sc1")
    e("v_mov_b32 v0, 0")
    e("v_permlane32_swap_b32 v12, v20")
    e("v_mov_b32 v1, 0")
    e(f"buffer_store_dword v12, v3, {WS}, s57 offen sc1")
    for i in range(10):
        e(f"v_fmac_f32 v0, 0, v{OA+i}")
        e(f"v_fmac_f32 v1, 0, v{OB+i}")
    e(f"v_add_f32 v0, v0, v{OA+10}")
    e(f"v_add_f32 v1, v1, v{OB+10}")
    e(f"s_mov_b32 s56, {f32(2.0**60)}")
    e(f"s_mov_b32 s57, {f32(2.0**-24)}")
    e("v_cmp_nge_f32 s[58:59], s56, v0")
    e("v_cmp_nle_f32 s[60:61], s57, v0")
    e("v_cmp_nge_f32 s[62:63], s56, v1")
    e("v_cmp_nle_f32 s[64:65], s57, v1")
    if opt.get("force_fallback"):
        e("s_mov_b64 s[58:59], -1")
    e("s_or_b64 s[58:59], s[58:59], s[60:61]")
    e("s_or_b64 s[62:63], s[62:63], s[64:65]")
    e("s_or_b64 s[58:59], s[58:59], s[62:63]")
    e("s_cselect_b32 s56, 1, 0")
    e("s_cmp_gt_u32 s56, s55")
    if not opt.get("nofb"):
        e("s_cbranch_scc1 .Lattn_fallback")


def gen_fallback(e):
    e.label(".Lattn_fallback")
    e("s_waitcnt vmcnt(0)")
    e("s_mov_b32 s55, 1")
    attn_addr_init(e)
    MA, MB = OA, OA + 1
    e(f"v_mov_b32 v{MA}, 0xff800000")
    e(f"v_mov_b32 v{MB}, 0xff800000")
    e(f"v_mov_b32 v{Q2A+1}, 0")
    e(f"v_mov_b32 v{Q2B+1}, 0")
    e("s_mov_b32 s54, 32")
    e.label(".Lattn_maxloop")
    e(f"ds_read_b128 {vr(K1LO,4)}, v{AK1}")
    e(f"ds_read_b128 {vr(K1HI,4)}, v{AK1} offset:1024")
    e(f"ds_read_b32 v{K2R}, v{AK2}")
    e("s_waitcnt lgkmcnt(0)")
    for buf, q1 in ((X_, Q1A), (Y_, Q1B)):
        e(f"v_mfma_f32_32x32x16_bf16 {vr(buf,16)}, {vr(K1LO,4)}, {vr(q1,4)}, 0")
        e(f"v_mfma_f32_32x32x16_bf16 {vr(buf+16,16)}, {vr(K1HI,4)}, {vr(q1,4)}, 0")
    e("s_nop 10")
    e(f"v_mfma_f32_32x32x4_2b_bf16 {vr(X_,32)}, {vr(K2R,2)}, {vr(Q2A,2)}, {vr(X_,32)}")
    e(f"v_mfma_f32_32x32x4_2b_bf16 {vr(Y_,32)}, {vr(K2R,2)}, {vr(Q2B,2)}, {vr(Y_,32)}")
    e("s_nop 15")
    e("s_nop 4")
    max_tree(e, MA, X_, 32, True)
    max_tree(e, MB, Y_, 32, True)
    e(f"v_add_u32 v{AK1}, {CH}, v{AK1}")
    e(f"v_add_u32 v{AK2}, {CH}, v{AK2}")
    e("s_sub_u32 s54, s54, 1")
    e("s_cmp_lg_u32 s54, 0")
    e("s_cbranch_scc1 .Lattn_maxloop")
    set_m(e, [(MA, OA + 2, Q2A + 1), (MB, OA + 3, Q2B + 1)])
    attn_addr_init(e)
    e(f"ds_read_b128 {vr(K1LO,4)}, v{AK1}")
    e(f"ds_read_b128 {vr(K1HI,4)}, v{AK1} offset:1024")
    e(f"ds_read_b32 v{K2R}, v{AK2}")
    for j in range(3):
        for r in rdV(j, 0):
            e(r)
    for i in range(32):
        e(f"v_mov_b32 v{OA+i}, 0")
    for i in range(8):
        e(f"v_mov_b32 v{Y_+24+i}, 0")
    e("s_waitcnt lgkmcnt(0)")
    e(f"v_mfma_f32_32x32x16_bf16 {vr(X_,16)}, {vr(K1LO,4)}, {vr(Q1A,4)}, 0")
    e(f"v_mfma_f32_32x32x16_bf16 {vr(X_+16,16)}, {vr(K1HI,4)}, {vr(Q1A,4)}, 0")
    e("s_nop 10")
    e(f"v_mfma_f32_32x32x4_2b_bf16 {vr(X_,32)}, {vr(K2R,2)}, {vr(Q2A,2)}, {vr(X_,32)}")
    e("s_nop 15")
    e("s_nop 4")
    e("s_mov_b32 s54, 4")
    e("s_branch .Lattn_loop")


def gen_out(e):
    L = f"v{LANE}"
    OFS, OE = (96, 112, 128, 80), 144
    nap, pdepth = e.opt.get("nap", 0), e.opt.get("pdepth", 0)
    e(f"v_and_b32 v246, 15, {L}")
    e(f"v_lshrrev_b32 v247, 4, {L}")
    e("v_lshrrev_b32 v3, 1, v247")
    e("v_lshlrev_b32 v3, 16, v3")
    e("v_and_b32 v4, 1, v247")
    e("v_lshl_add_u32 v3, v4, 9, v3")
    e("v_lshl_add_u32 v248, v246, 4, v3")
    e("s_lshr_b32 s61, s3, 2")
    e("s_lshl_b32 s61, s61, 4")
    e("s_and_b32 s62, s3, 3")
    e("s_add_u32 s61, s61, s62")
    e("s_lshl_b32 s58, s61, 17")
    e("s_lshl_b32 s59, s50, 11")
    e("s_add_u32 s58, s58, s59")
    e(f"s_add_u32 s58, s58, {O1}")
    for r in range(4):
        e(f"s_add_u32 s{62+r}, s4, {r + 1}")
        e(f"s_and_b32 s{62+r}, s{62+r}, 3")
        e(f"s_lshl_b32 s{62+r}, s{62+r}, 19")
        e(f"s_add_u32 s{62+r}, s{62+r}, s58")
    e("s_and_b32 s66, s4, 3")
    e("s_lshl_b32 s66, s66, 1")
    e("s_lshl_b32 s67, 3, s66")
    e("s_andn2_b32 s67, 0xff, s67")

    def o_loads(r):
        for tt in range(4):
            e(f"buffer_load_dwordx4 {vr(OFS[r]+4*tt,4)}, v248, {WS}, s{62+r} offen offset:{(tt//2)*1024+(tt%2)*256} sc1")

    def o_mfma(st, first=False):
        for tt in range(4):
            for tile in range(5):
                acc = vr((tt * 5 + tile) * 4, 4)
                e(f"v_mfma_f32_16x16x32_bf16 {acc}, {vr(WOM+20*st+4*tile,4)}, {vr(OFS[st]+4*tt,4)}, {'0' if first else acc}")

    def publish(pending):
        e("v_lshlrev_b32 v3, 16, v247")
        e("v_lshl_add_u32 v249, v246, 2, v3")
        e("v_mov_b32 v4, 0")
        e("s_lshl_b32 s59, s61, 14")
        e("s_lshl_b32 s60, s50, 8")
        e("s_add_u32 s59, s59, s60")
        e(f"s_add_u32 s59, s59, {O2}")
        e("s_add_u32 s61, s59, 8192")
        e(f"s_waitcnt vmcnt({pending})")
        e("s_mov_b64 exec, 1")
        e(f"buffer_store_dword v250, v4, {WS}, s21 offen sc1" if False else f"buffer_store_dword v{LANE + 1}, v4, {WS}, s21 offen sc1")
        e("s_mov_b64 exec, -1")
        e.stamp(8)
        e("s_barrier")
        e.stamp(9)

    def extra_loads():
        for tt in range(4):
            e(f"buffer_load_dword v{OE+2*tt}, v249, {WS}, s59 offen offset:{tt*64} sc1")
            e(f"buffer_load_dword v{OE+2*tt+1}, v249, {WS}, s61 offen offset:{tt*64} sc1")

    e(f"v_mov_b32 v{LANE + 1}, 1")
    e("s_waitcnt vmcnt(3)")
    e("v_cmp_ne_u32 vcc, 0, v254")
    e("s_and_b32 s68, vcc_lo, s67")
    e("s_cmp_eq_u32 s68, s67")
    e("s_branch .Lout_dyn" if e.opt.get("noearly") else "s_cbranch_scc0 .Lout_dyn")
    o_loads(0)
    o_loads(1)
    publish(8)
    e("s_waitcnt vmcnt(5)")
    e("s_branch .Lout_go")
    e.label(".Lout_dyn")
    publish(0)
    poll(e, 254, 250, WS, "s20", "v_cmp_ne_u32 vcc, 0, v254", "s67", nap=nap, depth=pdepth)
    o_loads(0)
    o_loads(1)
    e("s_waitcnt vmcnt(4)")
    e.label(".Lout_go")
    e.stamp(10)
    o_loads(2)
    e(f"buffer_load_dword v254, v250, {WS}, s20 offen sc1")
    o_mfma(0, True)
    e("s_waitcnt vmcnt(5)")
    o_mfma(1)
    poll(e, 254, 250, WS, "s20", "v_cmp_ne_u32 vcc, 0, v254", 0xff, first_loaded=True, nap=nap, depth=pdepth)
    o_loads(3)
    extra_loads()
    o_mfma(2)
    e("s_waitcnt vmcnt(8)")
    o_mfma(3)
    e.label(".Lout_extra")
    e("s_mul_i32 s58, s3, 18432")
    e(f"v_lshl_add_u32 v244, {L}, 4, s58")
    e("s_and_b32 s58, s3, 3" if e.opt.get("rrole", 2) else "s_lshr_b32 s58, s3, 1")
    e("s_mul_i32 s59, s58, 4608")
    e("s_lshr_b32 s60, s3, 2" if e.opt.get("rrole", 2) else "s_and_b32 s60, s3, 1")
    if e.opt.get("rrole", 2) == 2:
        e("s_xor_b32 s60, s60, 1")
    e("s_lshl_b32 s61, s60, 11")
    e("s_add_u32 s59, s59, s61")
    e(f"v_lshl_add_u32 v245, {L}, 4, s59")
    e(f"v_add_u32 v250, {3*18432}, v245")
    e(f"v_add_u32 v251, {6*18432}, v245")
    e(f"v_cmp_gt_u32 vcc, 32, {L}")
    e("v_mov_b32 v253, 0x40000")
    e("s_nop 0")
    e("v_cndmask_b32 v253, v253, v244, vcc")
    e("s_waitcnt vmcnt(0)")
    pend = []
    for tt in range(4):
        for tile in range(5):
            acc = vr((tt * 5 + tile) * 4, 4)
            e(f"v_mfma_f32_16x16x16_bf16 {acc}, {vr(WOE+2*tile,2)}, {vr(OE+2*tt,2)}, {acc}")
            pend.append(f"ds_write_b128 v{244 if tile < 4 else 253}, {acc} offset:{tt*4608 + tile*1024}")
            if len(pend) > 8:
                e(pend.pop(0))
    e.stamp(11)
    e("s_nop 3")
    for x in pend:
        e(x)
    srd(e, 20, 42, 2048 * 1152)
    e("s_lshl_b32 s59, s50, 6")
    e("s_lshl_b32 s58, s58, 4")
    e("s_add_u32 s59, s59, s58")
    e("v_add_u32 v84, s59, v246")
    e("v_mul_u32_u24 v84, 1152, v84")
    e("v_lshl_add_u32 v85, v247, 3, v84")
    e("v_lshl_add_u32 v84, v247, 4, v84")
    e("s_mul_i32 s59, s51, 144")
    e("s_lshl_b32 s61, s60, 6")
    e("s_add_u32 s61, s61, s59")
    e("s_waitcnt lgkmcnt(0)")
    e("s_barrier")
    e.stamp(12)

    def rd(dst, src, off):
        a, o = (245, 250, 251)[src // 3], (src % 3) * 18432 + off
        e(f"ds_read_b128 {vr(dst,4)}, v{a} offset:{o}")

    def tree(b):
        for step in (1, 2):
            for k in range(0, 8, 2 * step):
                for h in range(2):
                    e(f"v_pk_add_f32 {vr(b+4*k+2*h,2)}, {vr(b+4*k+2*h,2)}, {vr(b+4*(k+step)+2*h,2)}")
        for j in range(4):
            e(f"v_mul_f32 v{b+j}, v{GT}, v{b+j}")
        for j in range(4):
            e(f"v_fmac_f32 v{b+j}, v{GT+1}, v{b+16+j}")

    for t in range(2):
        for src in range(8):
            rd(t * 32 + 4 * src, src, t * 1024)
    e("s_waitcnt lgkmcnt(8)")
    tree(0)
    e("v_cvt_pk_bf16_f32 v88, v0, v1")
    e("v_cvt_pk_bf16_f32 v89, v2, v3")
    e("s_cmp_eq_u32 s60, 0")
    e("s_cbranch_scc1 .Lout_half0")
    for src in range(8):
        rd(96 + 4 * src, src, 2048)
    e("s_waitcnt lgkmcnt(8)")
    tree(32)
    e("v_cvt_pk_bf16_f32 v90, v32, v33")
    e("v_cvt_pk_bf16_f32 v91, v34, v35")
    e(f"buffer_store_dwordx4 v[88:91], v84, s[20:23], s61 offen{['', ' nt', ' sc1', ' sc0 sc1'][e.opt.get('ont', 0)]}")
    e("s_waitcnt lgkmcnt(0)")
    tree(96)
    e("v_cvt_pk_bf16_f32 v92, v96, v97")
    e("v_cvt_pk_bf16_f32 v93, v98, v99")
    e("s_mov_b32 exec_hi, 0")
    e(f"buffer_store_dwordx2 v[92:93], v85, s[20:23], s59 offen offset:128{['', ' nt', ' sc1', ' sc0 sc1'][e.opt.get('ont', 0)]}")
    e("s_mov_b32 exec_hi, -1")
    e("s_branch .Lout_fin")
    e.label(".Lout_half0")
    e("s_waitcnt lgkmcnt(0)")
    tree(32)
    e("v_cvt_pk_bf16_f32 v90, v32, v33")
    e("v_cvt_pk_bf16_f32 v91, v34, v35")
    e(f"buffer_store_dwordx4 v[88:91], v84, s[20:23], s61 offen{['', ' nt', ' sc1', ' sc0 sc1'][e.opt.get('ont', 0)]}")
    e.label(".Lout_fin")
    if "echoA" in e.opt:
        a, b = 72 + 2 * e.opt["echoA"], 72 + 2 * e.opt["echoB"]
        e("s_waitcnt vmcnt(0)")
        e.stamp(13)
        e(f"s_sub_u32 s60, s{b}, s{a}")
        e("s_add_u32 s60, s60, s98")
        e.label(".Lecho")
        e("s_memrealtime s[62:63]")
        e("s_waitcnt lgkmcnt(0)")
        e("s_sub_u32 s61, s62, s60")
        e("s_cmp_lt_i32 s61, 0")
        e("s_cbranch_scc1 .Lecho")
        e("s_endpgm")
    if getattr(e, "final", 0):
        e.opt = dict(e.opt, stamp=e.final)
    if e.opt.get("stamp"):
        e("s_waitcnt vmcnt(0)")
        e.stamp(13)
        e("s_lshl_b32 s68, s2, 3")
        e("s_add_u32 s68, s68, s3")
        e("s_lshl_b32 s68, s68, 7")
        e(f"s_add_u32 s68, s68, {STAMP}")
        e("s_mov_b64 exec, 1")
        e("v_mov_b32 v0, 0")
        for k in range(7):
            for j in range(4):
                e(f"v_mov_b32 v{4+j}, s{72+4*k+j}")
            e(f"buffer_store_dwordx4 v[4:7], v0, {WS}, s68 offen offset:{16*k}")
            e("s_nop 1")


HEAD = """; Kernarg layout for this problem (80 bytes, ptrs only, base s[0:1]):
"""


DOC = """;
"""


def generate(opt=None):
    opt = opt or {}
    e = E(opt)
    n = NAME + "_kernel"
    e.raw(HEAD.rstrip())
    lst = opt.get("aslist", 0)
    if lst in (2, 4):
        e.raw(f"; @launch kernel=nop_kernel grid=(256,1,1) block=({256 if lst == 2 else 512},1,1) lds={0 if lst == 2 else LDS_BYTES}")
    if lst:
        e.raw(f"; @launch kernel={n} grid=(256,1,1) block=(512,1,1) lds={LDS_BYTES}")
    else:
        e.raw(f"; @launch grid=(256,1,1) block=(512,1,1) lds={LDS_BYTES}")
    if lst in (3, 5):
        e.raw(f"; @launch kernel=nop_kernel grid=(256,1,1) block=({256 if lst == 3 else 512},1,1) lds={0 if lst == 3 else LDS_BYTES}")
    e.raw(DOC.rstrip())
    e.raw('.amdgcn_target "amdgcn-amd-amdhsa--gfx950"')
    if lst > 1:
        e.raw(".text\n.globl nop_kernel\n.p2align 8\n.type nop_kernel,@function\nnop_kernel:\n    s_endpgm")
        e.raw('.section .rodata,"a"\n.p2align 6\n.amdhsa_kernel nop_kernel')
        e.raw(f"  .amdhsa_next_free_vgpr {8 if lst < 4 else 256}\n  .amdhsa_next_free_sgpr 16\n  .amdhsa_accum_offset {8 if lst < 4 else 256}")
        e.raw("  .amdhsa_group_segment_fixed_size 0\n  .amdhsa_kernarg_size 80\n  .amdhsa_user_sgpr_count 2\n  .amdhsa_user_sgpr_kernarg_segment_ptr 1\n  .amdhsa_system_sgpr_workgroup_id_x 1\n.end_amdhsa_kernel")
    e.raw(".text")
    e.raw(f".globl {n}")
    e.raw(".p2align 8")
    e.raw(f".type {n},@function")
    e.label(n)
    e("s_cmp_ge_u32 s2, 256")
    e("s_cbranch_scc1 .Lend")
    e.stamp(0)
    e("s_load_dwordx16 s[28:43], s[0:1], 0")
    e("s_load_dwordx4 s[44:47], s[0:1], 64")
    e("v_lshrrev_b32 v1, 6, v0")
    e(f"v_and_b32 v{LANE}, 63, v0")
    e("v_readfirstlane_b32 s3, v1")
    e("s_and_b32 s4, s2, 7")
    e("s_lshr_b32 s5, s2, 3")
    e("s_getreg_b32 s6, hwreg(HW_REG_XCC_ID, 0, 4)")
    e("s_add_u32 s6, s6, 1")
    e("s_lshr_b32 s48, s5, 1")
    e("s_and_b32 s49, s5, 1")
    e("s_cmp_ge_u32 s3, 4")
    e("s_cbranch_scc0 .Lconsumer")
    gen_loader(e)
    e.label(".Lconsumer")
    gen_consumer(e)
    attn_setup(e)
    e.label(".Lp2_join")
    gen_attn(e)
    gen_out(e)
    e.label(".Lend")
    e("s_endpgm")
    if opt.get("codepf"):
        e.label(".Lcode_end")
    gen_fallback(e)
    e.raw('.section .rodata,"a"')
    e.raw(".p2align 6")
    e.raw(f".amdhsa_kernel {n}")
    e.raw("  .amdhsa_next_free_vgpr 256")
    e.raw("  .amdhsa_next_free_sgpr 100")
    e.raw("  .amdhsa_accum_offset 256")
    e.raw("  .amdhsa_group_segment_fixed_size 0")
    e.raw("  .amdhsa_kernarg_size 80")
    e.raw("  .amdhsa_user_sgpr_count 2")
    e.raw("  .amdhsa_user_sgpr_kernarg_segment_ptr 1")
    e.raw("  .amdhsa_system_sgpr_workgroup_id_x 1")
    e.raw(".end_amdhsa_kernel")
    return e.text()


if __name__ == "__main__":
    out = f"cdna_kernels/{NAME}.s"
    opt = {}
    for a in sys.argv[1:]:
        if a.startswith("-o="):
            out = a[3:]
        else:
            k, v = a.split("=")
            opt[k] = tuple(int(x) for x in v.split(",")) if k == "keep" else int(v)
    open(out, "w").write(generate(opt))
    print("wrote", out)
```
